```python
import torch

def _softmax(x, axis=-1):
    return torch.softmax(x, dim=axis)

def _gelu(x):
    return torch.nn.functional.gelu(x, approximate='tanh')

def _silu(x):
    return torch.nn.functional.silu(x)

def _sigmoid(x):
    return torch.sigmoid(x)

def _layernorm(x, axis=-1, eps=1e-05):
    m = x.mean(dim=axis, keepdim=True)
    v = x.var(dim=axis, keepdim=True, unbiased=False)
    return (x - m) / torch.sqrt(v + eps)

def _scatter_add(tgt, idx, src, axis=0):
    return tgt.clone().index_add_(axis, idx, src)

def _segment_sum(src, seg, n):
    out = torch.zeros((n,) + src.shape[1:], dtype=src.dtype)
    return out.index_add_(0, seg, src)

def _pad(x, pw):
    flat = tuple((v for pair in reversed(pw) for v in pair))
    return torch.nn.functional.pad(x, flat)
kernel_name = 'adaLN_cond__sliding_block__glu_gated_geglu__prompt'

def setup_inputs():

    _w = lambda a: (lambda t: t.to(torch.bfloat16) if t.is_floating_point() else t)(torch.as_tensor(a))

    def _A_setup():
        B, S, D = (1, 2048, 640)
        return {'x': _w((lambda *s: torch.randn(*s, dtype=torch.bfloat16) * 0.05)(B, S, D)), 'wqkv': _w((lambda *s: torch.randn(*s, dtype=torch.bfloat16) * 0.05)(D, 3 * D)), 'wo': _w((lambda *s: torch.randn(*s, dtype=torch.bfloat16) * 0.05)(D, D))}
    _A_in = _A_setup()

    def _B_setup():
        B, S, Dm, Df = (1, 2048, 640, 1728)
        return {'x': _w((lambda *s: torch.randn(*s, dtype=torch.bfloat16) * 0.05)(B, S, Dm)), 'w_gate': _w((lambda *s: torch.randn(*s, dtype=torch.bfloat16) * 0.8)(Dm, Df) * Dm ** (-0.5)), 'w_up': _w((lambda *s: torch.randn(*s, dtype=torch.bfloat16) * 0.8)(Dm, Df) * Dm ** (-0.5)), 'w_down': _w((lambda *s: torch.randn(*s, dtype=torch.bfloat16) * 0.8)(Df, Dm) * Df ** (-0.5))}
    _B_in = _B_setup()
    return {'A_x': _A_in['x'], 'A_wqkv': _A_in['wqkv'], 'A_wo': _A_in['wo'], 'B_x': _B_in['x'], 'B_w_gate': _B_in['w_gate'], 'B_w_up': _B_in['w_up'], 'B_w_down': _B_in['w_down'], 'c': _w((lambda *s: torch.randn(*s, dtype=torch.bfloat16) * 0.2)(1, 640) * 8.0), 'w_mod': _w((lambda *s: torch.randn(*s, dtype=torch.bfloat16) * 0.2)(640, 6 * 640) * 640 ** (-0.5) * 8.0)}

def reference(A_x, A_wqkv, A_wo, B_x, B_w_gate, B_w_up, B_w_down, c, w_mod):

    def _A_ref(x, wqkv, wo):
        B, S, D = x.shape
        H = 32
        Dh = D // H
        W = 256
        qkv = (lambda x, *d: x.permute(*d))((x @ wqkv).reshape(B, S, 3, H, Dh), 2, 0, 3, 1, 4)
        q, k, v = (qkv[0], qkv[1], qkv[2])
        scores = torch.einsum('bhqd,bhkd->bhqk', q, k) * Dh ** (-0.5)
        idx = torch.arange(S)
        mask = (idx[:, None] - idx[None, :] >= 0) & (idx[:, None] - idx[None, :] < W)
        scores = torch.where(mask[None, None], scores, -1000000000.0)
        p = _softmax(scores, axis=-1)
        o = torch.einsum('bhqk,bhkd->bhqd', p, v)
        return (lambda x, *d: x.permute(*d))(o, 0, 2, 1, 3).reshape(B, S, D) @ wo

    def _B_ref(x, w_gate, w_up, w_down):
        g = torch.einsum('bsd,df->bsf', x, w_gate)
        u = torch.einsum('bsd,df->bsf', x, w_up)
        h = _gelu(g) * u
        return torch.einsum('bsf,fd->bsd', h, w_down)
    x = A_x
    mod = (_silu(c) @ w_mod).reshape(c.shape[0], 6, 1, -1)
    sa, ca, ga, sb, cb, gb = (mod[:, 0].clone(), mod[:, 1].clone(), mod[:, 2].clone(), mod[:, 3].clone(), mod[:, 4].clone(), mod[:, 5].clone())
    h = _layernorm(x, axis=-1) * (1 + ca) + sa
    x = x + ga * _A_ref(h, A_wqkv, A_wo)
    h = _layernorm(x, axis=-1) * (1 + cb) + sb
    x = x + gb * _B_ref(h, B_w_gate, B_w_up, B_w_down)
    return x
```

```python
NAME='adaLN_cond__sliding_block__glu_gated_geglu__prompt'
WS_MOD=0x0
WS_SPEC=0x4000
WS_XH=0x100000
WS_Q=0x400000; WS_K=0x700000; WS_V=0xA00000
WS_O=0xE00000
WS_X2=0x1100000; WS_Y2=0x1400000; WS_ST=0x1700000
WS_HH=0x1800000
WS_REC=0x8000
XB=2048*640*2
class K:
    def __init__(s,label):
        s.label_=label; s.L=[]; s.uid=0
    def __call__(s,t):
        for ln in t.strip('\n').split('\n'):
            s.L.append('  '+ln.strip())
    def lab(s,l): s.L.append(l+':')
    def nl(s,p):
        s.uid+=1; return f'{s.label_[:2]}_{p}_{s.uid}'
    def text(s,vgpr=256,wgy=False):
        o=['.text',f'.globl {s.label_}','.p2align 8',f'.type {s.label_},@function',s.label_+':']+s.L
        o+=['.section .rodata,"a"','.p2align 6',f'.amdhsa_kernel {s.label_}',
            f'  .amdhsa_next_free_vgpr {vgpr}','  .amdhsa_next_free_sgpr 102',f'  .amdhsa_accum_offset {min(256,(vgpr+3)//4*4)}',
            '  .amdhsa_group_segment_fixed_size 0','  .amdhsa_kernarg_size 96','  .amdhsa_user_sgpr_count 2',
            '  .amdhsa_user_sgpr_kernarg_segment_ptr 1','  .amdhsa_system_sgpr_workgroup_id_x 1','.end_amdhsa_kernel']
        return '\n'.join(o)+'\n'
def v(a,n=1): return f'v{a}' if n==1 else f'v[{a}:{a+n-1}]'
def sr(a,n=1): return f's{a}' if n==1 else f's[{a}:{a+n-1}]'
def ldptr(k,dst,slot): k(f's_load_dwordx2 s[{dst}:{dst+1}], s[0:1], {slot*8}')
def srd(k,d,p,off,size):
    if off:
        k(f's_add_u32 s{d}, s{p}, {hex(off)}'); k(f's_addc_u32 s{d+1}, s{p+1}, 0')
    else:
        k(f's_mov_b32 s{d}, s{p}'); k(f's_mov_b32 s{d+1}, s{p+1}')
    k(f's_mov_b32 s{d+2}, {hex(size)}'); k(f's_mov_b32 s{d+3}, 0x00020000')

class Gemm:
    def __init__(g,k,NW,NWC,NT,NST,S,pitchX,wreg,vbase,mod=False,csplit=False):
        g.k=k; g.NW=NW; g.NWC=NWC; g.NT=NT; g.NST=NST; g.S=S; g.pX=pitchX; g.wreg=wreg; g.mod=mod
        g.NR=len(wreg); g.csplit=csplit
        g.nXi=4*(1 if csplit else NWC); g.XS=g.nXi*1024; g.SLOT=g.XS+g.NR*8192
        g.nXw=g.nXi//NW; g.nWw=8//NW if NW<=8 else 1
        assert g.nXi%NW==0 and 8%NW==0
        g.n=g.nXw+g.NR*g.nWw
        g.LDS=S*g.SLOT
        r=vbase
        g.acc=r; r+=16*NT
        g.fx=[r,r+4]; r+=8
        g.fw=[r,r+4*NT]; r+=8*NT
        g.vXo=r; r+=g.nXw
        g.vWo=r; r+=g.NR*g.nWw
        g.vXa=r; r+=4
        g.vWa=r; r+=2
        if mod:
            r=(r+1)//2*2
            g.raw=r; r+=4
            g.t1=r; r+=8
            g.t0=r; r+=8
            g.tmp=r; r+=8
            g.vT=r; r+=1
        g.vend=r
        g.sM0=40; g.sXo=41; g.sWo=42; g.sIt=44; g.sRd=45; g.sD=46; g.sT=47
    def setup(g,vtid,sWave,sXsrd,sRowByte,sColBytes,vt):
        k=g.k; g.sXsrd=sXsrd
        a,b,c,d=vt,vt+1,vt+2,vt+3
        k(f'v_lshrrev_b32 v{a}, 3, v{vtid}')
        k(f's_lshl_b32 s{g.sT}, s{sWave}, 3')
        k(f'v_add_u32 v{a}, s{g.sT}, v{a}')
        k(f'v_lshrrev_b32 v{b}, 1, v{a}'); k(f'v_and_b32 v{b}, 7, v{b}')
        k(f'v_and_b32 v{c}, 7, v{vtid}'); k(f'v_xor_b32 v{b}, v{b}, v{c}')
        k(f'v_lshlrev_b32 v{b}, 4, v{b}')
        k(f's_mov_b32 s{g.sT}, {g.pX}')
        k(f'v_mul_lo_u32 v{a}, v{a}, s{g.sT}'); k(f'v_add_u32 v{a}, v{a}, v{b}'); k(f'v_add_u32 v{g.vXo}, s{sRowByte}, v{a}')
        for j in range(1,g.nXw): k(f'v_add_u32 v{g.vXo+j}, {g.NW*8*g.pX*j}, v{g.vXo}')
        for r_ in range(g.NR):
            pW=g.wreg[r_][1]
            k(f'v_lshrrev_b32 v{a}, 3, v{vtid}'); k(f's_lshl_b32 s{g.sT}, s{sWave}, 3'); k(f'v_add_u32 v{a}, s{g.sT}, v{a}')
            k(f'v_lshrrev_b32 v{b}, 4, v{vtid}'); k(f'v_and_b32 v{b}, 1, v{b}'); k(f'v_lshlrev_b32 v{b}, 2, v{b}')
            k(f'v_xor_b32 v{b}, v{b}, v{c}'); k(f'v_lshlrev_b32 v{b}, 4, v{b}')
            k(f's_mov_b32 s{g.sT}, {pW}')
            k(f'v_mul_lo_u32 v{a}, v{a}, s{g.sT}'); k(f'v_add_u32 v{a}, v{a}, v{b}')
            k(f'v_add_u32 v{g.vWo+r_*g.nWw}, s{sColBytes[r_]}, v{a}')
            for j in range(1,g.nWw): k(f'v_add_u32 v{g.vWo+r_*g.nWw+j}, {g.NW*8*pW*j}, v{g.vWo+r_*g.nWw}')
        k(f'v_and_b32 v{a}, 31, v{vtid}')
        if not g.csplit:
            k(f's_lshl_b32 s{g.sT}, s{sWave}, 5'); k(f'v_add_u32 v{a}, s{g.sT}, v{a}')
        k(f'v_lshrrev_b32 v{b}, 1, v{a}'); k(f'v_and_b32 v{b}, 7, v{b}'); k(f'v_lshrrev_b32 v{c}, 5, v{vtid}')
        k(f'v_xor_b32 v{b}, v{b}, v{c}'); k(f'v_lshlrev_b32 v{b}, 4, v{b}'); k(f'v_lshlrev_b32 v{a}, 7, v{a}')
        k(f'v_add_u32 v{g.vXa}, v{a}, v{b}')
        for ks in range(1,4): k(f'v_xor_b32 v{g.vXa+ks}, {ks<<5}, v{g.vXa}')
        k(f'v_lshlrev_b32 v{a}, 3, v{c}'); k(f'v_and_b32 v{b}, 15, v{vtid}'); k(f'v_lshrrev_b32 v{b}, 2, v{b}'); k(f'v_add_u32 v{a}, v{a}, v{b}')
        k(f'v_lshlrev_b32 v{a}, 7, v{a}')
        k(f'v_lshrrev_b32 v{b}, 4, v{vtid}'); k(f'v_and_b32 v{b}, 1, v{b}'); k(f'v_lshlrev_b32 v{b}, 5, v{b}'); k(f'v_add_u32 v{a}, v{a}, v{b}')
        k(f'v_and_b32 v{b}, 3, v{vtid}'); k(f'v_lshlrev_b32 v{b}, 3, v{b}'); k(f'v_add_u32 v{a}, v{a}, v{b}')
        k(f'v_lshrrev_b32 v{b}, 3, v{vtid}'); k(f'v_and_b32 v{b}, 1, v{b}'); k(f'v_lshlrev_b32 v{b}, 6, v{b}'); k(f'v_add_u32 v{a}, v{a}, v{b}')
        k(f'v_add_u32 v{g.vWa}, {g.XS}, v{a}')
        if g.csplit:
            k(f's_and_b32 s{g.sT}, s{sWave}, 1'); k(f's_lshl_b32 s{g.sT}, s{g.sT}, 6'); k(f'v_xor_b32 v{g.vWa}, s{g.sT}, v{g.vWa}')
            k(f's_lshr_b32 s{g.sT}, s{sWave}, 1'); k(f's_lshl_b32 s{g.sT}, s{g.sT}, 13'); k(f'v_add_u32 v{g.vWa}, s{g.sT}, v{g.vWa}')
        k(f'v_xor_b32 v{g.vWa+1}, 64, v{g.vWa}')
        if g.mod:
            k(f'v_lshlrev_b32 v{g.vT}, 5, v{c}'); k(f'v_add_u32 v{g.vT}, {g.LDS}, v{g.vT}')
        k(f's_lshl_b32 s{g.sM0}, s{sWave}, 10')
        k(f's_mov_b32 s{g.sXo}, 0'); k(f's_mov_b32 s{g.sWo}, 0'); k(f's_mov_b32 s{g.sWo+1}, 0')
        k(f's_mov_b32 s{g.sRd}, 0'); k(f's_mov_b32 s{g.sIt}, 0')
        for i in range(16*g.NT): k(f'v_mov_b32 v{g.acc+i}, 0')
    def dma(g,slot_sgpr=None,slot_imm=0):
        k=g.k
        if slot_sgpr is not None:
            k(f's_add_u32 s{g.sT}, s{g.sM0}, s{slot_sgpr}')
        else:
            k(f's_add_u32 s{g.sT}, s{g.sM0}, {slot_imm}')
        for j in range(g.nXw):
            k(f's_add_u32 m0, s{g.sT}, {j*g.NW*1024}'); k('s_nop 0')
            k(f'buffer_load_dwordx4 v{g.vXo+j}, s[{g.sXsrd}:{g.sXsrd+3}], s{g.sXo} offen lds')
        for r_ in range(g.NR):
            for j in range(g.nWw):
                k(f's_add_u32 m0, s{g.sT}, {g.XS+r_*8192+j*g.NW*1024}'); k('s_nop 0')
                so=g.sWo+(1 if (r_>0 and g.wreg[r_][1]!=g.wreg[0][1]) else 0)
                k(f'buffer_load_dwordx4 v{g.vWo+r_*g.nWw+j}, s[{g.wreg[r_][0]}:{g.wreg[r_][0]+3}], s{so} offen lds')
        k(f's_add_u32 s{g.sXo}, s{g.sXo}, 128')
        k(f's_add_u32 s{g.sWo}, s{g.sWo}, {64*g.wreg[0][1]}')
    def rd_x(g,ks,b):
        k=g.k
        if g.mod:
            k(f'ds_read_b128 v[{g.raw}:{g.raw+3}], v{g.vXa+ks}')
            k(f'ds_read_b128 v[{g.t1}:{g.t1+3}], v{g.vT} offset:{ks*64}')
            k(f'ds_read_b128 v[{g.t1+4}:{g.t1+7}], v{g.vT} offset:{ks*64+16}')
            k(f'ds_read_b128 v[{g.t0}:{g.t0+3}], v{g.vT} offset:{2560+ks*64}')
            k(f'ds_read_b128 v[{g.t0+4}:{g.t0+7}], v{g.vT} offset:{2560+ks*64+16}')
        else:
            k(f'ds_read_b128 v[{g.fx[b]}:{g.fx[b]+3}], v{g.vXa+ks}')
    def rd_w(g,ks,b):
        k=g.k
        for t in range(g.NT):
            for j in range(2):
                d=g.fw[b]+4*t+2*j
                k(f'ds_read_b64_tr_b16 v[{d}:{d+1}], v{g.vWa+(t&1)} offset:{(t>>1)*8192+(16*ks+4*j)*128}')
    def modulate(g,b):
        o=[]
        for i in range(4):
            o.append(f'v_lshlrev_b32 v{g.tmp+2*i}, 16, v{g.raw+i}')
            o.append(f'v_and_b32 v{g.tmp+2*i+1}, 0xffff0000, v{g.raw+i}')
        for i in range(8): o.append(f'v_fma_f32 v{g.tmp+i}, v{g.tmp+i}, v{g.t1+i}, v{g.t0+i}')
        for i in range(4): o.append(f'v_cvt_pk_bf16_f32 v{g.fx[b]+i}, v{g.tmp+2*i}, v{g.tmp+2*i+1}')
        return o
    def mfma(g,t,b):
        a=g.acc+16*t
        return f'v_mfma_f32_32x32x16_bf16 v[{a}:{a+15}], v[{g.fw[b]+4*t}:{g.fw[b]+4*t+3}], v[{g.fx[b]}:{g.fx[b]+3}], v[{a}:{a+15}]'
    def step(g,ks,last,compute=True,extra=None):
        k=g.k; b=ks&1; nb=b^1
        nrw=2*g.NT
        pre = not(last and ks==3)
        if ks==3 and not last:
            l1=k.nl('w'); l2=k.nl('w')
            k(f's_cmp_lt_u32 s{g.sIt}, {g.NST-g.S+1}')
            k(f's_cbranch_scc1 {l1}'); k('s_waitcnt vmcnt(0)'); k.lab(l1)
            k(f's_waitcnt vmcnt({(g.S-2)*g.n}) lgkmcnt(0)')
            k('s_barrier')
            k(f's_cmp_ge_u32 s{g.sIt}, {g.NST-g.S}'); k(f's_cbranch_scc1 {l2}')
            g.dma(slot_sgpr=g.sRd); k.lab(l2)
            k(f's_add_u32 s{g.sD}, s{g.sRd}, {g.SLOT}'); k(f's_cmp_eq_u32 s{g.sD}, {g.S*g.SLOT}')
            k(f's_cselect_b32 s{g.sD}, 0, s{g.sD}'); k(f's_sub_u32 s{g.sT}, s{g.sD}, s{g.sRd}'); k(f's_mov_b32 s{g.sRd}, s{g.sD}')
            if compute:
                for i in range(4): k(f'v_add_u32 v{g.vXa+i}, s{g.sT}, v{g.vXa+i}')
                for i in range(2): k(f'v_add_u32 v{g.vWa+i}, s{g.sT}, v{g.vWa+i}')
                if g.mod: k(f'v_add_u32 v{g.vT}, 256, v{g.vT}')
        elif compute:
            k('s_waitcnt lgkmcnt(0)')
        if not compute: return
        nks=(ks+1)&3
        if pre:
            g.rd_x(nks,nb)
            if extra: extra(ks,'pre',last)
            g.rd_w(nks,nb)
        ms=[g.mfma(t,b) for t in range(g.NT)]
        if g.mod and pre:
            k(ms[0]); k(ms[1]); k(f's_waitcnt lgkmcnt({nrw})')
            mo=g.modulate(nb)
            for x in mo[:10]: k(x)
            k(ms[2])
            for x in mo[10:]: k(x)
            k(ms[3])
        else:
            for m in ms: k(m)
        if extra: extra(ks,'post',last)
    def run(g,sWave,extra=None,pre_wait=None):
        k=g.k
        for s_ in range(g.S): g.dma(slot_imm=s_*g.SLOT)
        if pre_wait: pre_wait()
        k(f's_waitcnt vmcnt({(g.S-1)*g.n})'); k('s_barrier')
        helper=g.NWC<g.NW
        if helper:
            lh=k.nl('help'); ld=k.nl('done')
            k(f's_cmp_ge_u32 s{sWave}, {g.NWC}'); k(f's_cbranch_scc1 {lh}')
        g.rd_x(0,0)
        if extra: extra(-1,'pre',False)
        g.rd_w(0,0)
        if g.mod:
            k(f's_waitcnt lgkmcnt({2*g.NT})')
            for x in g.modulate(0): k(x)
        lp=k.nl('loop'); k.lab(lp)
        for ks in range(4): g.step(ks,False,extra=extra)
        k(f's_add_u32 s{g.sIt}, s{g.sIt}, 1'); k(f's_cmp_lt_u32 s{g.sIt}, {g.NST-1}'); k(f's_cbranch_scc1 {lp}')
        for ks in range(4): g.step(ks,True,extra=extra)
        if helper:
            k(f's_branch {ld}')
            k.lab(lh); lp2=k.nl('hl'); k.lab(lp2)
            g.step(3,False,compute=False)
            k(f's_add_u32 s{g.sIt}, s{g.sIt}, 1'); k(f's_cmp_lt_u32 s{g.sIt}, {g.NST-1}'); k(f's_cbranch_scc1 {lp2}')
            k('s_endpgm')
            k.lab(ld)
        k('s_nop 15')
```

```python
from gen_common import *
def guard(k,n):
    k(f's_cmp_ge_u32 s2, {n}'); k(f's_cbranch_scc1 {k.label_[:2]}_END')
def endk(k):
    k.lab(f'{k.label_[:2]}_END'); k('s_endpgm')
def lane_wave(k,vl,sw):
    k(f'v_lshrrev_b32 v{vl}, 6, v0'); k('s_nop 0'); k(f'v_readfirstlane_b32 s{sw}, v{vl}'); k(f'v_and_b32 v{vl}, 63, v0'); k('s_nop 3')

def p0():
    k=K('p0_kernel'); guard(k,256)
    ldptr(k,4,0); ldptr(k,6,7); ldptr(k,8,8); ldptr(k,10,11)
    lane_wave(k,1,3)
    k('s_waitcnt lgkmcnt(0)')
    srd(k,12,4,0,XB)
    srd(k,16,6,0,1280)
    srd(k,20,8,0,640*7680)
    srd(k,24,10,WS_MOD,0x8000)
    srd(k,28,10,WS_XH,XB)
    k('''s_lshl_b32 s33, s2, 3
    s_lshl_b32 s34, s3, 2
    s_add_u32 s33, s33, s34
    v_lshrrev_b32 v2, 4, v1
    v_add_u32 v2, s33, v2
    s_movk_i32 s34, 1280
    v_mul_lo_u32 v2, v2, s34
    v_and_b32 v3, 15, v1
    v_lshlrev_b32 v3, 4, v3
    v_add_u32 v2, v2, v3''')
    k('s_cmp_ge_u32 s3, 2'); k('s_cbranch_scc1 p0_noln1')
    for i in range(5): k(f'buffer_load_dwordx4 v[{40+4*i}:{43+4*i}], v2, s[12:15], 0 offen offset:{256*i}')
    k.lab('p0_noln1')
    k('s_cmp_ge_u32 s2, 240'); k('s_cbranch_scc1 p0_nomod')
    k('''s_and_b32 s35, s2, 7
    s_mul_i32 s35, s35, 30
    s_lshr_b32 s36, s2, 3
    s_add_u32 s35, s35, s36
    s_lshl_b32 s36, s35, 5
    v_lshrrev_b32 v4, 1, v0
    v_and_b32 v5, 1, v0
    v_lshlrev_b32 v5, 4, v5
    s_movk_i32 s37, 7680
    v_mul_lo_u32 v6, v4, s37
    v_add_u32 v6, v6, v5
    v_add_u32 v6, s36, v6
    v_lshlrev_b32 v7, 1, v4''')
    for i in range(5):
        k(f's_mov_b32 s38, {i*128*7680}')
        k(f'buffer_load_dwordx4 v[{8+4*i}:{11+4*i}], v6, s[20:23], s38 offen')
        k(f'buffer_load_ushort v{28+i}, v7, s[16:19], 0 offen offset:{256*i}')
    k('s_waitcnt vmcnt(0)')
    k('s_mov_b32 s38, 0xbfb8aa3b')
    for i in range(5):
        r=28+i
        k(f'''v_lshlrev_b32 v{r}, 16, v{r}
        v_mul_f32 v33, s38, v{r}
        v_exp_f32 v33, v33
        s_nop 0
        v_add_f32 v33, 1.0, v33
        v_rcp_f32 v33, v33
        s_nop 0
        v_mul_f32 v{r}, v{r}, v33
        v_cvt_pk_bf16_f32 v{r}, v{r}, v{r}
        v_lshlrev_b32 v{r}, 16, v{r}''')
    for j in range(8): k(f'v_mov_b32 v{60+j}, 0')
    for i in range(5):
        for d in range(4):
            w=8+4*i+d
            k(f'v_lshlrev_b32 v33, 16, v{w}'); k(f'v_and_b32 v34, 0xffff0000, v{w}')
            k(f'v_fmac_f32 v{60+2*d}, v33, v{28+i}'); k(f'v_fmac_f32 v{61+2*d}, v34, v{28+i}')
    for sh in (2,4,8):
        k('s_nop 1')
        for j in range(8): k(f'v_add_f32_dpp v{60+j}, v{60+j}, v{60+j} row_ror:{sh} row_mask:0xf bank_mask:0xf')
    k('''v_lshrrev_b32 v33, 4, v0
    v_lshlrev_b32 v33, 6, v33
    v_and_b32 v34, 1, v0
    v_lshlrev_b32 v34, 5, v34
    v_add_u32 v33, v33, v34
    v_and_b32 v34, 15, v0
    v_cmp_gt_u32 vcc, 2, v34
    s_and_saveexec_b64 s[38:39], vcc
    ds_write_b128 v33, v[60:63]
    ds_write_b128 v33, v[64:67] offset:16
    s_mov_b64 exec, s[38:39]
    s_waitcnt lgkmcnt(0)
    s_barrier''')
    k('s_cmp_lg_u32 s3, 0'); k('s_cbranch_scc1 p0_nomod')
    k('v_and_b32 v34, 15, v1'); k('v_lshlrev_b32 v33, 2, v34')
    for p in range(16): k(f'ds_read_b32 v{60+p}, v33 offset:{p*64}')
    k('s_waitcnt lgkmcnt(0)')
    for st in (8,4,2,1):
        for p in range(st): k(f'v_add_f32 v{60+p}, v{60+p}, v{60+p+st}')
    k('''v_cvt_pk_bf16_f32 v60, v60, v60
    v_lshlrev_b32 v60, 16, v60
    s_mul_i32 s37, s35, 1639
    s_lshr_b32 s37, s37, 16
    s_cmp_eq_u32 s37, 1
    s_cselect_b32 s38, 1, 0
    s_cmp_eq_u32 s37, 4
    s_cselect_b32 s38, 1, s38
    s_cmp_eq_u32 s38, 0
    s_cbranch_scc1 p0_m1
    v_add_f32 v60, 1.0, v60
    v_cvt_pk_bf16_f32 v60, v60, v60
    v_lshlrev_b32 v60, 16, v60''')
    k.lab('p0_m1')
    k('''s_lshl_b32 s36, s35, 6
    v_add_u32 v33, s36, v33
    v_cmp_gt_u32 vcc, 16, v1
    s_and_saveexec_b64 s[40:41], vcc
    buffer_store_dword v60, v33, s[24:27], 0 offen
    s_cmp_lt_u32 s37, 3
    s_cbranch_scc1 p0_m2
    s_cmp_eq_u32 s37, 5
    s_cbranch_scc1 p0_m2
    s_cmp_eq_u32 s37, 3
    s_cselect_b32 s38, 1280, 0
    s_mul_i32 s39, s37, 1280
    s_lshl_b32 s36, s35, 5
    s_sub_u32 s36, s36, s39
    s_add_u32 s36, s36, s38
    s_add_u32 s36, s36, 0x4000
    v_lshlrev_b32 v33, 1, v34
    v_add_u32 v33, s36, v33
    v_lshrrev_b32 v60, 16, v60
    buffer_store_short v60, v33, s[24:27], 0 offen''')
    k.lab('p0_m2')
    k('s_mov_b64 exec, s[40:41]')
    k.lab('p0_nomod')
    k('s_cmp_ge_u32 s3, 2'); k('s_cbranch_scc1 p0_END')
    k('s_waitcnt vmcnt(0)')
    for i in range(20):
        k(f'v_lshlrev_b32 v{80+2*i}, 16, v{40+i}'); k(f'v_and_b32 v{81+2*i}, 0xffff0000, v{40+i}')
    for j in range(4): k(f'v_add_f32 v{70+j}, v{80+j}, v{84+j}')
    for i in range(8,40): k(f'v_add_f32 v{70+(i&3)}, v{70+(i&3)}, v{80+i}')
    k('v_add_f32 v70, v70, v71'); k('v_add_f32 v72, v72, v73'); k('v_add_f32 v70, v70, v72')
    for sh in (1,2,4,8):
        k('s_nop 1'); k(f'v_add_f32_dpp v70, v70, v70 row_ror:{sh} row_mask:0xf bank_mask:0xf')
    k('s_mov_b32 s38, 0x3acccccd')
    k('v_mul_f32 v70, s38, v70')
    for i in range(40): k(f'v_sub_f32 v{80+i}, v{80+i}, v70')
    for j in range(4): k(f'v_mul_f32 v{72+j}, v{80+j}, v{80+j}')
    for i in range(4,40): k(f'v_fmac_f32 v{72+(i&3)}, v{80+i}, v{80+i}')
    k('v_add_f32 v72, v72, v73'); k('v_add_f32 v74, v74, v75'); k('v_add_f32 v72, v72, v74')
    for sh in (1,2,4,8):
        k('s_nop 1'); k(f'v_add_f32_dpp v72, v72, v72 row_ror:{sh} row_mask:0xf bank_mask:0xf')
    k('''v_mov_b32 v73, 0x3727c5ac
    v_fmac_f32 v73, s38, v72
    v_rsq_f32 v73, v73
    s_nop 0''')
    for i in range(40): k(f'v_mul_f32 v{80+i}, v{80+i}, v73')
    for i in range(20): k(f'v_cvt_pk_bf16_f32 v{40+i}, v{80+2*i}, v{81+2*i}')
    for i in range(5): k(f'buffer_store_dwordx4 v[{40+4*i}:{43+4*i}], v2, s[28:31], 0 offen offset:{256*i}')
    endk(k)
    return k.text(128),'grid=(256,1,1) block=(256,1,1) lds=1024'

def p1():
    k=K('p1_kernel'); guard(k,240)
    ldptr(k,4,1); ldptr(k,6,11)
    lane_wave(k,1,3)
    k('''s_lshr_b32 s33, s2, 3
    s_cmp_ge_u32 s33, 15
    s_cselect_b32 s34, 1, 0
    s_cselect_b32 s35, 15, 0
    s_sub_u32 s33, s33, s35
    s_and_b32 s35, s2, 7
    s_lshl_b32 s35, s35, 1
    s_add_u32 s34, s34, s35''')
    k('s_waitcnt lgkmcnt(0)')
    srd(k,8,6,WS_XH,XB); srd(k,12,4,0,640*3840); srd(k,16,6,WS_MOD,15360)
    g=Gemm(k,4,4,4,10,3,1280,[(12,3840),(12,3840)],vbase=16,mod=True)
    k(f's_mul_i32 s36, s34, {128*1280}')
    k('s_lshl_b32 s37, s33, 8'); k('s_add_u32 s38, s37, 128')
    g.setup(1,3,8,36,[37,38],2)
    k(f'''v_lshlrev_b32 v2, 4, v0
    s_lshl_b32 s39, s3, 10
    v_cmp_gt_u32 vcc, 160, v0
    s_and_saveexec_b64 s[48:49], vcc
    s_cbranch_execz p1_nt
    s_add_u32 m0, s39, {g.LDS}
    s_movk_i32 s50, 2560
    buffer_load_dwordx4 v2, s[16:19], s50 offen lds
    s_add_u32 m0, s39, {g.LDS+2560}
    s_nop 0
    buffer_load_dwordx4 v2, s[16:19], 0 offen lds''')
    k.lab('p1_nt'); k('s_mov_b64 exec, s[48:49]')
    OF=g.vend; assert OF+16<=250
    def pre():
        k('''s_mul_i32 s51, s33, 52
        s_lshr_b32 s51, s51, 8
        s_mul_i32 s52, s51, 5
        s_sub_u32 s52, s33, s52
        s_lshl_b32 s52, s52, 5
        s_cmp_eq_u32 s51, 2
        s_cselect_b32 s53, 48, 40''')
        k(f's_mul_i32 s54, s51, {WS_K-WS_Q}'); k(f's_add_u32 s54, s54, {WS_Q}')
        k('s_add_u32 s20, s6, s54'); k('s_addc_u32 s21, s7, 0'); k('s_lshl_b32 s22, s53, 16'); k('s_mov_b32 s23, 0x00020000')
        k('''s_lshl_b32 s55, s53, 11
        s_sub_u32 s55, s55, 40
        s_lshl_b32 s56, s34, 7
        s_lshl_b32 s57, s3, 5
        s_add_u32 s56, s56, s57
        v_and_b32 v2, 31, v1
        v_add_u32 v2, s56, v2
        v_mul_lo_u32 v2, v2, s53
        v_lshrrev_b32 v3, 5, v1
        v_add_u32 v3, s52, v3
        s_mov_b32 s57, 52429''')
        for t in range(4):
            for rg in range(4):
                o=OF+4*t+rg
                k(f'v_add_u32 v4, {8*t+2*rg}, v3'); k(f'v_mul_u32_u24 v5, s57, v4'); k('v_lshrrev_b32 v5, 18, v5')
                k('v_lshl_add_u32 v4, v4, 3, v2'); k(f'v_mad_u32_u24 v{o}, v5, s55, v4')
    g.run(3,pre_wait=pre)
    k('s_cmp_lg_u32 s51, 0'); k('s_cbranch_scc1 p1_nsc'); k('s_mov_b32 s58, 0x3ea52b5c')
    for i in range(64): k(f'v_mul_f32 v{g.acc+i}, s58, v{g.acc+i}')
    k.lab('p1_nsc')
    for t in range(4):
        for rg in range(4):
            a=g.acc+16*t+4*rg; d=2+2*((4*t+rg)%6)
            k(f'v_cvt_pk_bf16_f32 v{d}, v{a}, v{a+1}'); k(f'v_cvt_pk_bf16_f32 v{d+1}, v{a+2}, v{a+3}')
            k(f'buffer_store_dwordx2 v[{d}:{d+1}], v{OF+4*t+rg}, s[20:23], 0 offen')
    endk(k)
    return k.text(256),f'grid=(240,1,1) block=(256,1,1) lds={g.LDS+5120}'
```

```python
from gen_common import *
from gen_p01 import guard,endk,lane_wave
def p2():
    k=K('p2_kernel'); guard(k,256)
    ldptr(k,6,11)
    lane_wave(k,1,3)
    KB=0; VB=20480
    S=lambda b:64+16*b
    Q0,Q1=8,12; KA=[16,24]; KBf=[20,28]; O=32; VF=[48,56]; P=[208,216]; PM=224; M=232; ONE=240; MB=244; T=248
    k('''s_and_b32 s33, s2, 7
    s_lshl_b32 s33, s33, 2
    s_lshr_b32 s34, s2, 3
    s_and_b32 s34, s34, 3
    s_add_u32 s33, s33, s34
    s_lshr_b32 s34, s2, 5
    s_waitcnt lgkmcnt(0)''')
    srd(k,8,6,WS_Q,32*2048*40); srd(k,12,6,WS_K,32*2048*40); srd(k,16,6,WS_V,32*2048*48); srd(k,20,6,WS_O,XB)
    k('''s_mul_i32 s36, s33, 81920
    s_mul_i32 s39, s34, 10240
    s_add_u32 s36, s36, s39
    s_cmp_eq_u32 s34, 0
    s_cselect_b32 s39, 0, 10240
    s_sub_u32 s35, s36, s39
    s_mul_i32 s38, s33, 98304
    s_mul_i32 s39, s34, 12288
    s_add_u32 s38, s38, s39
    s_cmp_eq_u32 s34, 0
    s_cselect_b32 s39, 0, 12288
    s_sub_u32 s37, s38, s39
    v_lshlrev_b32 v2, 4, v1''')
    def dma(i_expr_j,half,srd_,sa,sb,ldsb):
        k(f's_add_u32 s40, s3, {8*i_expr_j}')
        k(f's_lshl_b32 s41, s40, 10')
        k(f's_add_u32 m0, s41, {ldsb}')
        k(f's_cmp_lt_u32 s40, {half}')
        k(f's_cselect_b32 s42, s{sa}, s{sb}'); k(f's_cselect_b32 s43, 0, {half*1024}')
        k('s_add_u32 s42, s42, s41'); k('s_sub_u32 s42, s42, s43')
        k(f'buffer_load_dwordx4 v2, s[{srd_}:{srd_+3}], s42 offen lds')
    dma(0,10,12,35,36,KB); dma(1,10,12,35,36,KB)
    k('s_cmp_ge_u32 s3, 4'); k('s_cbranch_scc1 p2_k3'); dma(2,10,12,35,36,KB); k.lab('p2_k3')
    for j in range(3): dma(j,12,16,37,38,VB)
    k(f'''s_lshl_b32 s40, s33, 11
    s_lshl_b32 s41, s34, 8
    s_add_u32 s40, s40, s41
    s_lshl_b32 s42, s3, 5
    s_add_u32 s40, s40, s42
    s_add_u32 s44, s41, s42
    v_and_b32 v3, 31, v1
    v_lshrrev_b32 v4, 5, v1
    v_add_u32 v5, s40, v3
    v_mul_u32_u24 v5, 40, v5
    v_lshl_add_u32 v6, v4, 4, v5
    buffer_load_dwordx2 v[{Q0}:{Q0+1}], v6, s[8:11], 0 offen
    buffer_load_dwordx2 v[{Q0+2}:{Q0+3}], v6, s[8:11], 0 offen offset:8
    buffer_load_dwordx2 v[{Q1}:{Q1+1}], v5, s[8:11], 0 offen offset:32''')
    k('''v_add_u32 v7, s44, v3
    v_mul_u32_u24 v7, 1280, v7
    s_mul_i32 s45, s33, 40
    v_add_u32 v7, s45, v7
    v_lshl_add_u32 v7, v4, 3, v7''')
    k('v_lshlrev_b32 v5, 2, v4'); k('v_sub_u32 v5, v3, v5')
    for r in range(16): k(f'v_cmp_gt_i32 s[{60+2*r}:{61+2*r}], {8*(r>>2)+(r&3)}, v5')
    k(f'v_mov_b32 v{T}, 0xffff'); k(f'v_mov_b32 v{T+1}, 0xffff0000')
    for u in range(8):
        k(f'v_cndmask_b32 v{M+u}, 0, v{T}, s[{60+4*u}:{61+4*u}]'); k(f'v_cndmask_b32 v{T+2}, 0, v{T+1}, s[{62+4*u}:{63+4*u}]')
        k(f'v_or_b32 v{M+u}, v{M+u}, v{T+2}')
    k(f'''s_mul_i32 s46, s3, 1280
    v_mul_u32_u24 v{T}, 40, v3
    v_add_u32 v{T}, s46, v{T}
    v_add_u32 v{T+1}, 32, v{T}
    v_lshl_add_u32 v{T}, v4, 4, v{T}''')
    VKA,VKB,VVA=252,253,254
    k(f'v_mov_b32 v{VKA}, v{T}'); k(f'v_mov_b32 v{VKB}, v{T+1}')
    k(f'''s_lshl_b32 s46, s3, 5
    v_and_b32 v{T}, 15, v1
    v_lshrrev_b32 v{T}, 2, v{T}
    v_lshl_add_u32 v{T}, v4, 2, v{T}
    v_add_u32 v{T}, s46, v{T}
    v_mul_u32_u24 v{T}, 48, v{T}
    v_lshrrev_b32 v{T+1}, 4, v1
    v_and_b32 v{T+1}, 1, v{T+1}
    v_lshl_add_u32 v{T}, v{T+1}, 5, v{T}
    v_and_b32 v{T+1}, 3, v1
    v_lshl_add_u32 v{T}, v{T+1}, 3, v{T}
    v_add_u32 v{VVA}, {VB}, v{T}''')
    for b in range(2): k(f'v_mov_b32 v{KBf[b]+2}, 0'); k(f'v_mov_b32 v{KBf[b]+3}, 0')
    k(f'v_mov_b32 v{ONE}, 0x3f803f80'); k(f'v_mov_b32 v{ONE+1}, 0x3f80'); k(f'v_mov_b32 v{ONE+2}, 0'); k(f'v_mov_b32 v{ONE+3}, 0')
    k(f'v_mov_b32 v{MB+2}, 0'); k(f'v_mov_b32 v{MB+3}, 0'); k(f'v_mov_b32 v{Q1+2}, 0'); k(f'v_mov_b32 v{Q1+3}, 0')
    for i in range(16): k(f'v_mov_b32 v{O+i}, 0')
    k('s_cmp_eq_u32 s34, 0'); k('s_cselect_b32 s47, 8, 0'); k('s_sub_u32 s48, s47, s3'); k('s_cmp_eq_u32 s34, 0'); k('s_cselect_b32 s47, s48, 0')
    k('v_cmp_eq_u32 s[58:59], 0, v4')
    k(f'v_mul_u32_u24 v{T}, 48, v0'); k(f'v_mov_b32 v{T+2}, 0x3f80'); k(f'v_mov_b32 v{T+3}, 0')
    k('s_waitcnt vmcnt(0)'); k('s_barrier')
    k(f'ds_write_b64 v{T}, v[{T+2}:{T+3}] offset:{VB+40}')
    k(f'v_cndmask_b32 v{Q1}, 0, v{Q1}, s[58:59]'); k(f'v_cndmask_b32 v{Q1+1}, 0, v{Q1+1}, s[58:59]')
    def rdk(b):
        s_=b&1
        k(f'ds_read_b64 v[{KBf[s_]}:{KBf[s_]+1}], v{VKB} offset:{KB+b*1280}')
        k(f'ds_read_b64 v[{KA[s_]}:{KA[s_]+1}], v{VKA} offset:{KB+b*1280}')
        k(f'ds_read_b64 v[{KA[s_]+2}:{KA[s_]+3}], v{VKA} offset:{KB+b*1280+8}')
    MX=[2,5,6,T]
    first=[True]*4
    def mx(b):
        for i in range(8):
            c=i&3; a=S(b)+2*i
            if first[c]: k(f'v_max_f32 v{MX[c]}, v{a}, v{a+1}'); first[c]=False
            else: k(f'v_max3_f32 v{MX[c]}, v{MX[c]}, v{a}, v{a+1}')
    fills=[]
    rdk(0)
    for b in range(9):
        if b<8: rdk(b+1); k('s_waitcnt lgkmcnt(3)')
        else: k('s_waitcnt lgkmcnt(0)')
        s_=b&1
        if b<8: k(f's_cmp_gt_u32 s47, {b}'); k(f's_cbranch_scc1 p2_fill{b}'); fills.append(b)
        k(f'v_mfma_f32_32x32x16_bf16 v[{S(b)}:{S(b)+15}], v[{KBf[s_]}:{KBf[s_]+3}], v[{Q1}:{Q1+3}], 0')
        k(f'v_mfma_f32_32x32x16_bf16 v[{S(b)}:{S(b)+15}], v[{KA[s_]}:{KA[s_]+3}], v[{Q0}:{Q0+3}], v[{S(b)}:{S(b)+15}]')
        if b<8: k.lab(f'p2_back{b}')
        if b>=3: mx(b-2)
    k('s_barrier')
    def rdv(kb,s_):
        for st in range(2):
            for u in range(2):
                d=VF[s_]+4*st+2*u
                k(f'ds_read_b64_tr_b16 v[{d}:{d+1}], v{VVA} offset:{kb*1536+st*768+u*384}')
    rdv(0,0)
    mx(7)
    k('s_nop 3')
    for r in range(16): k(f'v_cndmask_b32 v{S(0)+r}, v{S(8)+r}, v{S(0)+r}, s[{60+2*r}:{61+2*r}]')
    mx(0)
    k(f'v_max3_f32 v2, v2, v5, v6'); k(f'v_max_f32 v2, v2, v{T}'); k('v_mov_b32 v5, v2'); k('s_nop 1')
    k('v_permlane32_swap_b32 v2, v5'); k('s_nop 1'); k('v_max_f32 v2, v2, v5')
    k(f'''v_sub_f32 v2, 0, v2
    v_and_b32 v5, 0xffff0000, v2
    v_sub_f32 v2, v2, v5
    v_and_b32 v6, 0xffff0000, v2
    v_sub_f32 v2, v2, v6
    v_lshrrev_b32 v5, 16, v5
    v_or_b32 v5, v5, v6
    v_lshrrev_b32 v2, 16, v2
    v_cndmask_b32 v{MB}, 0, v5, s[58:59]
    v_cndmask_b32 v{MB+1}, 0, v2, s[58:59]
    s_nop 1''')
    def sub(b): k(f'v_mfma_f32_32x32x16_bf16 v[{S(b)}:{S(b)+15}], v[{ONE}:{ONE+3}], v[{MB}:{MB+3}], v[{S(b)}:{S(b)+15}]')
    sub(0); sub(1); k('s_nop 7')
    def pv(vs,st,p): k(f'v_mfma_f32_32x32x16_bf16 v[{O}:{O+15}], v[{VF[vs]+4*st}:{VF[vs]+4*st+3}], v[{p+4*st}:{p+4*st+3}], v[{O}:{O+15}]')
    vs=0
    for b in range(8):
        p=P[b&1]
        if b+2<8: sub(b+2)
        nxt = 8 if b==0 else (b+1 if b<7 else None)
        if nxt is not None: rdv(nxt,vs^1)
        for i in range(16): k(f'v_exp_f32 v{S(b)+i}, v{S(b)+i}')
        k('s_nop 0')
        for u in range(8): k(f'v_cvt_pk_bf16_f32 v{p+u}, v{S(b)+2*u}, v{S(b)+2*u+1}')
        if b==0:
            for u in range(8): k(f'v_bfi_b32 v{PM+u}, v{M+u}, 0, v{p+u}')
            for u in range(8): k(f'v_and_b32 v{p+u}, v{M+u}, v{p+u}')
            k('s_waitcnt lgkmcnt(4)'); pv(vs,0,p); pv(vs,1,p); vs^=1
            rdv(1,vs^1)
            k('s_waitcnt lgkmcnt(4)'); pv(vs,0,PM); pv(vs,1,PM); vs^=1
        else:
            k('s_nop 0')
            k(f's_waitcnt lgkmcnt({4 if nxt is not None else 0})'); pv(vs,0,p); pv(vs,1,p); vs^=1
    k('s_nop 15')
    k(f'v_mov_b32 v2, v{O+8}'); k(f'v_mov_b32 v5, v{O+8}'); k('s_nop 1'); k('v_permlane32_swap_b32 v2, v5'); k('s_nop 1')
    k('v_rcp_f32 v5, v5'); k('s_nop 0')
    for i in range(12): k(f'v_mul_f32 v{O+i}, v{O+i}, v5')
    for i in range(6): k(f'v_cvt_pk_bf16_f32 v{48+i}, v{O+2*i}, v{O+2*i+1}')
    k('buffer_store_dwordx2 v[48:49], v7, s[20:23], 0 offen'); k('buffer_store_dwordx2 v[50:51], v7, s[20:23], 0 offen offset:16')
    k('s_mov_b64 exec, s[58:59]'); k('buffer_store_dwordx2 v[52:53], v7, s[20:23], 0 offen offset:32')
    k('s_endpgm')
    for b in fills:
        k.lab(f'p2_fill{b}')
        for i in range(16): k(f'v_mov_b32 v{S(b)+i}, 0xff800000')
        k(f's_branch p2_back{b}')
    endk(k)
    return k.text(256),'grid=(256,1,1) block=(512,1,1) lds=45312'
```

```python
from gen_common import *
from gen_p01 import guard,endk,lane_wave
def rbcb(k,sid,srb,scb,n):
    k(f'''s_and_b32 s33, s2, 7
    s_mul_i32 s33, s33, 28
    s_lshr_b32 s34, s2, 3
    s_add_u32 s33, s33, s34
    s_cmp_ge_u32 s33, 220
    s_cbranch_scc1 {k.label_[:2]}_END
    s_mul_i32 s34, s33, 6554
    s_lshr_b32 s34, s34, 16
    s_mul_i32 s35, s34, 10
    s_sub_u32 s{scb}, s33, s35
    s_mul_i32 s34, s34, 96
    s_min_u32 s{srb}, s34, 1952''')
def rowoff(k,vd,srow0,pitch,vt):
    k(f's_lshl_b32 s59, s3, 5'); k(f's_add_u32 s59, s59, s{srow0}'); k(f'v_and_b32 v{vt}, 31, v1'); k(f'v_add_u32 v{vt}, s59, v{vt}')
    k(f's_movk_i32 s59, {pitch}'); k(f'v_mul_lo_u32 v{vd}, v{vt}, s59')
def p3():
    k=K('p3_kernel'); guard(k,251)
    ldptr(k,4,2); ldptr(k,6,11); ldptr(k,24,0); ldptr(k,26,4); ldptr(k,28,5)
    lane_wave(k,1,3)
    k('s_cmp_ge_u32 s2, 224'); k('s_cbranch_scc1 p3_special')
    rbcb(k,2,60,61,220)
    k('s_waitcnt lgkmcnt(0)')
    srd(k,8,6,WS_O,XB); srd(k,12,4,0,640*1280); srd(k,16,6,WS_MOD,15360); srd(k,20,24,0,XB)
    srd(k,64,6,WS_X2,XB); srd(k,68,6,WS_Y2,XB); srd(k,72,6,WS_ST,2048*160)
    g=Gemm(k,4,3,2,10,4,1280,[(12,1280)],vbase=16)
    k('s_mul_i32 s36, s60, 1280'); k('s_lshl_b32 s37, s61, 7')
    g.setup(1,3,8,36,[37],2)
    R=g.vend; R=(R+3)//4*4
    XV=R; GA=R+16; S2=GA+32; VO=S2+32; VS=VO+1; VM=VO+2
    rowoff(k,VO,60,1280,2)
    k(f'v_lshrrev_b32 v3, 5, v1'); k(f'v_lshlrev_b32 v4, 3, v3'); k(f'v_add_u32 v{VO}, v{VO}, v4'); k(f'v_add_u32 v{VO}, s37, v{VO}')
    k(f'v_mul_u32_u24 v{VS}, 160, v2'); k(f's_lshl_b32 s38, s61, 4'); k(f'v_add_u32 v{VS}, s38, v{VS}'); k(f'v_add_u32 v{VS}, v{VS}, v4')
    k(f'v_lshlrev_b32 v{VM}, 4, v3'); k('s_lshl_b32 s38, s61, 8'); k(f'v_add_u32 v{VM}, s38, v{VM}')
    for t in range(2):
        for rg in range(4):
            i=4*t+rg
            k(f'buffer_load_dwordx2 v[{XV+2*i}:{XV+2*i+1}], v{VO}, s[20:23], 0 offen offset:{t*64+rg*16}')
            k(f's_movk_i32 s38, {2*2560}'); k(f'buffer_load_dwordx4 v[{GA+4*i}:{GA+4*i+3}], v{VM}, s[16:19], s38 offen offset:{t*128+rg*32}')
            k(f's_movk_i32 s38, {4*2560}'); k(f'buffer_load_dwordx4 v[{S2+4*i}:{S2+4*i+3}], v{VM}, s[16:19], s38 offen offset:{t*128+rg*32}')
    g.run(3)
    for i in range(8):
        for e in range(2):
            x=XV+2*i+e
            k(f'v_lshlrev_b32 v2, 16, v{x}'); k(f'v_and_b32 v3, 0xffff0000, v{x}')
            k(f'v_fma_f32 v{g.acc+4*i+2*e}, v{g.acc+4*i+2*e}, v{GA+4*i+2*e}, v2'); k(f'v_fma_f32 v{g.acc+4*i+2*e+1}, v{g.acc+4*i+2*e+1}, v{GA+4*i+2*e+1}, v3')
    for i in range(8):
        a=g.acc+4*i; t,rg=i>>2,i&3
        k(f'v_cvt_pk_bf16_f32 v{XV+2*i}, v{a}, v{a+1}'); k(f'v_cvt_pk_bf16_f32 v{XV+2*i+1}, v{a+2}, v{a+3}')
        k(f'buffer_store_dwordx2 v[{XV+2*i}:{XV+2*i+1}], v{VO}, s[64:67], 0 offen offset:{t*64+rg*16}')
    for i in range(32): k(f'v_mul_f32 v{S2+i}, v{S2+i}, v{g.acc+i}')
    for i in range(8):
        t,rg=i>>2,i&3
        k(f'v_cvt_pk_bf16_f32 v{GA+2*i}, v{S2+4*i}, v{S2+4*i+1}'); k(f'v_cvt_pk_bf16_f32 v{GA+2*i+1}, v{S2+4*i+2}, v{S2+4*i+3}')
        k(f'buffer_store_dwordx2 v[{GA+2*i}:{GA+2*i+1}], v{VO}, s[68:71], 0 offen offset:{t*64+rg*16}')
    for j in range(4): k(f'v_add_f32 v{4+j}, v{g.acc+j}, v{g.acc+4+j}')
    for i in range(8,32): k(f'v_add_f32 v{4+(i&3)}, v{4+(i&3)}, v{g.acc+i}')
    k('v_add_f32 v4, v4, v5'); k('v_add_f32 v6, v6, v7'); k('v_add_f32 v8, v4, v6'); k('v_mul_f32 v2, 0x3d000000, v8')
    for i in range(32): k(f'v_sub_f32 v{g.acc+i}, v{g.acc+i}, v2')
    for j in range(4): k(f'v_mul_f32 v{4+j}, v{g.acc+j}, v{g.acc+j}')
    for i in range(4,32): k(f'v_fmac_f32 v{4+(i&3)}, v{g.acc+i}, v{g.acc+i}')
    k('v_add_f32 v4, v4, v5'); k('v_add_f32 v6, v6, v7'); k('v_add_f32 v9, v4, v6')
    k(f'buffer_store_dwordx2 v[8:9], v{VS}, s[72:75], 0 offen')
    k('s_endpgm')
    k.lab('p3_special')
    k('s_sub_u32 s61, s2, 224'); k('s_waitcnt lgkmcnt(0)')
    srd(k,8,6,WS_SPEC,2560); srd(k,12,26,0,640*3456); srd(k,16,28,0,640*3456); srd(k,20,6,WS_REC,2*1728*16)
    g2=Gemm(k,4,4,1,10,4,1280,[(12,3456),(16,3456)],vbase=16,csplit=True)
    k('s_mov_b32 s36, 0'); k('s_lshl_b32 s37, s61, 7')
    g2.setup(1,3,8,36,[37,37],2)
    g2.run(3)
    k('''s_lshr_b32 s38, s3, 1
    s_mul_i32 s38, s38, 1728
    s_lshl_b32 s39, s61, 6
    s_add_u32 s38, s38, s39
    s_and_b32 s39, s3, 1
    s_lshl_b32 s39, s39, 5
    s_add_u32 s38, s38, s39
    v_lshrrev_b32 v3, 5, v1
    v_lshlrev_b32 v3, 2, v3
    v_add_u32 v3, s38, v3
    v_lshlrev_b32 v3, 4, v3
    v_and_b32 v2, 31, v1
    v_lshl_add_u32 v3, v2, 3, v3
    v_cmp_gt_u32 vcc, 2, v2
    s_and_saveexec_b64 s[40:41], vcc''')
    for r in range(16):
        a=g2.acc+r; d=4+2*(r%4)
        k(f'v_and_b32 v12, 0xffff0000, v{a}'); k(f'v_sub_f32 v13, v{a}, v12'); k(f'v_cvt_pk_bf16_f32 v{d}, v12, v13'); k(f'v_mov_b32 v{d+1}, v{d}')
        k(f'buffer_store_dwordx2 v[{d}:{d+1}], v3, s[20:23], 0 offen offset:{(8*(r>>2)+(r&3))*16}')
        k('s_nop 1')
    endk(k)
    return k.text(192),f'grid=(251,1,1) block=(256,1,1) lds={max(g.LDS,g2.LDS)}'

def p4():
    k=K('p4_kernel'); guard(k,216)
    ldptr(k,4,4); ldptr(k,24,5); ldptr(k,6,11)
    lane_wave(k,1,3)
    k('s_and_b32 s60, s2, 7'); k('s_lshl_b32 s60, s60, 8'); k('s_lshr_b32 s61, s2, 3')
    k('s_waitcnt lgkmcnt(0)')
    srd(k,8,6,WS_Y2,XB); srd(k,12,4,0,640*3456); srd(k,16,24,0,640*3456); srd(k,20,6,WS_REC,2*1728*16)
    srd(k,64,6,WS_ST,2048*160); srd(k,68,6,WS_HH,2048*3456)
    g=Gemm(k,8,8,4,10,3,1280,[(12,3456),(16,3456)],vbase=16)
    k('s_mul_i32 s36, s60, 1280'); k('s_lshl_b32 s37, s61, 7')
    g.setup(1,3,8,36,[37,37],2)
    R=(g.vend+3)//4*4
    RC=R; ST=RC+16; VO=ST+20; BF=(VO+1+3)//4*4; K0=BF+4; K1=K0+1; IR=K0+2; TT=K0+4
    k('v_and_b32 v2, 31, v1'); k('s_lshl_b32 s38, s61, 6'); k('v_add_u32 v3, s38, v2'); k('v_lshlrev_b32 v3, 4, v3')
    for t in range(4):
        k(f's_mov_b32 s38, {((t>>1)*1728+(t&1)*32)*16}'); k(f'buffer_load_dwordx4 v[{RC+4*t}:{RC+4*t+3}], v3, s[20:23], s38 offen')
    k('s_lshl_b32 s59, s3, 5'); k('s_add_u32 s59, s59, s60'); k('v_add_u32 v2, s59, v2')
    k('v_lshrrev_b32 v4, 5, v1'); k('v_mul_u32_u24 v5, 160, v2'); k('v_mul_u32_u24 v3, 80, v4'); k('v_add_u32 v5, v5, v3')
    for i in range(5): k(f'buffer_load_dwordx4 v[{ST+4*i}:{ST+4*i+3}], v5, s[64:67], 0 offen offset:{16*i}')
    k('s_movk_i32 s59, 3456'); k(f'v_mul_lo_u32 v{VO}, v2, s59'); k(f'v_lshl_add_u32 v{VO}, v4, 3, v{VO}'); k(f'v_add_u32 v{VO}, s37, v{VO}')
    def pre():
        k(f's_waitcnt vmcnt({g.S*g.n})')
        k(f'v_add_f32 v2, v{ST}, v{ST+2}')
        for i in range(2,10): k(f'v_add_f32 v2, v2, v{ST+2*i}')
        k('v_mov_b32 v3, v2'); k('s_nop 1'); k('v_permlane32_swap_b32 v2, v3'); k('s_nop 1'); k('v_add_f32 v2, v2, v3')
        k('v_mul_f32 v2, 0x3acccccd, v2')
        k('v_mov_b32 v3, 0')
        for i in range(10):
            k(f'v_mul_f32 v4, 0x3d000000, v{ST+2*i}'); k('v_sub_f32 v4, v4, v2'); k('v_mul_f32 v4, v4, v4')
            k(f'v_add_f32 v3, v3, v{ST+2*i+1}'); k('v_fmac_f32 v3, 0x42000000, v4')
        k('v_mov_b32 v4, v3'); k('s_nop 1'); k('v_permlane32_swap_b32 v3, v4'); k('s_nop 1'); k('v_add_f32 v3, v3, v4')
        k(f'v_mov_b32 v{IR}, 0x3727c5ac'); k(f'v_fmac_f32 v{IR}, 0x3acccccd, v3')
        k(f'v_sqrt_f32 v5, v{IR}'); k(f'v_rsq_f32 v6, v{IR}'); k('s_nop 0')
        k('v_sub_f32 v2, 0, v2')
        k('v_and_b32 v7, 0xffff0000, v2'); k('v_sub_f32 v2, v2, v7'); k(f'v_cvt_pk_bf16_f32 v{BF}, v7, v7'); k(f'v_cvt_pk_bf16_f32 v{BF+1}, v2, v2')
        k('v_and_b32 v7, 0xffff0000, v5'); k('v_sub_f32 v5, v5, v7'); k(f'v_cvt_pk_bf16_f32 v{BF+2}, v7, v7'); k(f'v_cvt_pk_bf16_f32 v{BF+3}, v5, v5')
        k('v_cmp_gt_u32 vcc, 32, v1')
        for i in range(4): k(f'v_cndmask_b32 v{BF+i}, 0, v{BF+i}, vcc')
        k(f'v_mul_f32 v{K0}, 0xc0135761, v6'); k('v_mul_f32 v7, v6, v6'); k('v_mul_f32 v7, v7, v6'); k(f'v_mul_f32 v{K1}, 0xbdd2d3e8, v7')
        k('s_nop 1')
        for t in range(4):
            a=g.acc+16*t
            k(f'v_mfma_f32_32x32x16_bf16 v[{a}:{a+15}], v[{RC+4*t}:{RC+4*t+3}], v[{BF}:{BF+3}], v[{a}:{a+15}]')
    g.run(3,pre_wait=pre)
    for t in range(2):
        for rg in range(4):
            for e in range(4):
                ag=g.acc+16*t+4*rg+e; au=ag+32; x=TT+e; y=TT+4+e
                k(f'v_mul_f32 v{x}, v{ag}, v{ag}'); k(f'v_fma_f32 v{x}, v{x}, v{K1}, v{K0}'); k(f'v_mul_f32 v{x}, v{x}, v{ag}')
                k(f'v_exp_f32 v{x}, v{x}'); k(f'v_mul_f32 v{y}, v{ag}, v{au}'); k(f'v_fma_f32 v{x}, v{x}, v{IR}, v{IR}')
                k(f'v_rcp_f32 v{x}, v{x}')
            k('s_nop 0')
            for e in range(4): k(f'v_mul_f32 v{TT+4+e}, v{TT+4+e}, v{TT+e}')
            d=2+2*((4*t+rg)%6)
            k(f'v_cvt_pk_bf16_f32 v{d}, v{TT+4}, v{TT+5}'); k(f'v_cvt_pk_bf16_f32 v{d+1}, v{TT+6}, v{TT+7}')
            k(f'buffer_store_dwordx2 v[{d}:{d+1}], v{VO}, s[68:71], 0 offen offset:{t*64+rg*16}')
    endk(k)
    assert TT+8<=256
    return k.text(256),f'grid=(216,1,1) block=(512,1,1) lds={g.LDS}'

def p5():
    k=K('p5_kernel'); guard(k,224)
    ldptr(k,4,6); ldptr(k,6,11); ldptr(k,24,9)
    lane_wave(k,1,3)
    rbcb(k,2,60,61,220)
    k('s_waitcnt lgkmcnt(0)')
    srd(k,8,6,WS_HH,2048*3456); srd(k,12,4,0,1728*1280); srd(k,16,6,WS_MOD,15360); srd(k,20,6,WS_X2,XB); srd(k,64,24,0,XB)
    g=Gemm(k,4,3,2,27,4,3456,[(12,1280)],vbase=16)
    k('s_mul_i32 s36, s60, 3456'); k('s_lshl_b32 s37, s61, 7')
    g.setup(1,3,8,36,[37],2)
    R=(g.vend+3)//4*4
    XV=R; GB=R+16; VO=GB+32; VM=VO+1
    rowoff(k,VO,60,1280,2)
    k(f'v_lshrrev_b32 v3, 5, v1'); k(f'v_lshlrev_b32 v4, 3, v3'); k(f'v_add_u32 v{VO}, v{VO}, v4'); k(f'v_add_u32 v{VO}, s37, v{VO}')
    k(f'v_lshlrev_b32 v{VM}, 4, v3'); k('s_lshl_b32 s38, s61, 8'); k(f'v_add_u32 v{VM}, s38, v{VM}')
    for t in range(2):
        for rg in range(4):
            i=4*t+rg
            k(f'buffer_load_dwordx2 v[{XV+2*i}:{XV+2*i+1}], v{VO}, s[20:23], 0 offen offset:{t*64+rg*16}')
            k(f's_movk_i32 s38, {5*2560}'); k(f'buffer_load_dwordx4 v[{GB+4*i}:{GB+4*i+3}], v{VM}, s[16:19], s38 offen offset:{t*128+rg*32}')
    g.run(3)
    for i in range(8):
        t,rg=i>>2,i&3
        for e in range(2):
            x=XV+2*i+e
            k(f'v_lshlrev_b32 v2, 16, v{x}'); k(f'v_and_b32 v3, 0xffff0000, v{x}')
            k(f'v_fma_f32 v{g.acc+4*i+2*e}, v{g.acc+4*i+2*e}, v{GB+4*i+2*e}, v2'); k(f'v_fma_f32 v{g.acc+4*i+2*e+1}, v{g.acc+4*i+2*e+1}, v{GB+4*i+2*e+1}, v3')
        a=g.acc+4*i
        k(f'v_cvt_pk_bf16_f32 v{XV+2*i}, v{a}, v{a+1}'); k(f'v_cvt_pk_bf16_f32 v{XV+2*i+1}, v{a+2}, v{a+3}')
        k(f'buffer_store_dwordx2 v[{XV+2*i}:{XV+2*i+1}], v{VO}, s[64:67], 0 offen offset:{t*64+rg*16}')
    endk(k)
    return k.text(160),f'grid=(224,1,1) block=(256,1,1) lds={g.LDS}'
```

```python
import sys
sys.path.insert(0,'dev')
from gen_common import *
import gen_p01
def build(phases,out):
    hdr=open('cdna_kernels/'+NAME+'.s.ref').read().split('\n')
    top=[l for l in hdr if l.startswith(';') and '@launch' not in l and 'Override' not in l and 'grid=ceil' not in l]
    body='';ll=[]
    for n,f in phases:
        t,l=f(); body+=t; ll.append(f'; @launch kernel={n}_kernel {l}')
    open(out,'w').write('\n'.join(top)+'\n'+'\n'.join(ll)+'\n.amdgcn_target "amdgcn-amd-amdhsa--gfx950"\n'+body)
if __name__=='__main__':
    ph=[('p0',gen_p01.p0),('p1',gen_p01.p1)]
    try:
        import gen_p2; ph.append(('p2',gen_p2.p2))
        import gen_p345; ph+= [('p3',gen_p345.p3),('p4',gen_p345.p4),('p5',gen_p345.p5)]
    except ImportError as e: print('partial',e)
    build(ph,sys.argv[1] if len(sys.argv)>1 else 'k.s')
```

```python
NAME='adaLN_cond__sliding_block__glu_gated_geglu__prompt'
WS_MOD=0x0
WS_SPEC=0x4000
WS_XH=0x100000
WS_Q=0x400000; WS_K=0x700000; WS_V=0xA00000
WS_O=0xE00000
WS_X2=0x1100000; WS_Y2=0x1400000; WS_ST=0x1700000
WS_HH=0x1800000
WS_REC=0x8000
XB=2048*640*2
import os
EXP=os.environ.get('EXP','')
PROF=False
WS_PROF=0x1F00000
class K:
    def __init__(s,label):
        s.label_=label; s.L=[]; s.uid=0
    def __call__(s,t):
        for ln in t.strip('\n').split('\n'):
            s.L.append('  '+ln.strip())
    def lab(s,l): s.L.append(l+':')
    def ts(s,i):
        if PROF: s('s_memtime s[100:101]'); s('s_waitcnt lgkmcnt(0)'); s(f's_mov_b32 s{94+i}, s100')
    def tsdump(s,phase,n,sws):
        if not PROF: return
        l=s.nl('tsd')
        s('s_cmp_lg_u32 s3, 0'); s(f's_cbranch_scc1 {l}')
        s(f's_add_u32 s76, s{sws}, {hex(WS_PROF+phase*256*64)}'); s(f's_addc_u32 s77, s{sws+1}, 0'); s('s_mov_b32 s78, 0x10000'); s('s_mov_b32 s79, 0x00020000')
        s('s_lshl_b32 s100, s2, 6'); s('v_mov_b32 v2, s100')
        for i in range(n):
            s(f'v_mov_b32 v3, s{94+i}'); s(f'buffer_store_dword v3, v2, s[76:79], 0 offen offset:{4*i}'); s('s_nop 1')
        s.lab(l)
    def nl(s,p):
        s.uid+=1; return f'{s.label_[:2]}_{p}_{s.uid}'
    def text(s,vgpr=256,wgy=False):
        o=['.text',f'.globl {s.label_}','.p2align 8',f'.type {s.label_},@function',s.label_+':']+s.L
        o+=['.section .rodata,"a"','.p2align 6',f'.amdhsa_kernel {s.label_}',
            f'  .amdhsa_next_free_vgpr {vgpr}','  .amdhsa_next_free_sgpr 102',f'  .amdhsa_accum_offset {min(256,(vgpr+3)//4*4)}',
            '  .amdhsa_group_segment_fixed_size 0','  .amdhsa_kernarg_size 96','  .amdhsa_user_sgpr_count 2',
            '  .amdhsa_user_sgpr_kernarg_segment_ptr 1','  .amdhsa_system_sgpr_workgroup_id_x 1','.end_amdhsa_kernel']
        return '\n'.join(o)+'\n'
def v(a,n=1): return f'v{a}' if n==1 else f'v[{a}:{a+n-1}]'
def sr(a,n=1): return f's{a}' if n==1 else f's[{a}:{a+n-1}]'
def ldptr(k,dst,slot): k(f's_load_dwordx2 s[{dst}:{dst+1}], s[0:1], {slot*8}')
def srd(k,d,p,off,size):
    if off:
        k(f's_add_u32 s{d}, s{p}, {hex(off)}'); k(f's_addc_u32 s{d+1}, s{p+1}, 0')
    else:
        k(f's_mov_b32 s{d}, s{p}'); k(f's_mov_b32 s{d+1}, s{p+1}')
    k(f's_mov_b32 s{d+2}, {hex(size)}'); k(f's_mov_b32 s{d+3}, 0x00020000')

class Gemm:
    def __init__(g,k,NW,NWC,NT,NST,S,pitchX,wreg,vbase,mod=False,csplit=False):
        g.k=k; g.NW=NW; g.NWC=NWC; g.NT=NT; g.NST=NST; g.S=S; g.pX=pitchX; g.wreg=wreg; g.mod=mod
        if EXP=='twice': g.NST=NST=2*NST
        g.NR=len(wreg); g.csplit=csplit
        g.nXi=4*(1 if csplit else NWC); g.XS=g.nXi*1024; g.SLOT=g.XS+g.NR*8192
        g.nXw=g.nXi//NW; g.nWw=8//NW if NW<=8 else 1
        assert g.nXi%NW==0 and 8%NW==0
        g.n=g.nXw+g.NR*g.nWw
        g.LDS=S*g.SLOT
        r=vbase
        g.acc=r; r+=16*NT
        g.fx=[r,r+4]; r+=8
        g.fw=[r,r+4*NT]; r+=8*NT
        g.vXo=r; r+=g.nXw
        g.vWo=r; r+=g.NR*g.nWw
        g.vXa=r; r+=4
        g.vWa=r; r+=2
        if mod:
            r=(r+1)//2*2
            g.raw=r; r+=4
            g.t1=r; r+=8
            g.t0=r; r+=8
            g.tmp=r; r+=8
            g.vT=r; r+=1
        g.vend=r
        g.sM0=40; g.sXo=41; g.sWo=42; g.sIt=44; g.sRd=45; g.sD=46; g.sT=47
    def setup(g,vtid,sWave,sXsrd,sRowByte,sColBytes,vt):
        k=g.k; g.sXsrd=sXsrd
        a,b,c,d=vt,vt+1,vt+2,vt+3
        k(f'v_lshrrev_b32 v{a}, 3, v{vtid}')
        k(f's_lshl_b32 s{g.sT}, s{sWave}, 3')
        k(f'v_add_u32 v{a}, s{g.sT}, v{a}')
        k(f'v_lshrrev_b32 v{b}, 1, v{a}'); k(f'v_and_b32 v{b}, 7, v{b}')
        k(f'v_and_b32 v{c}, 7, v{vtid}'); k(f'v_xor_b32 v{b}, v{b}, v{c}')
        k(f'v_lshlrev_b32 v{b}, 4, v{b}')
        k(f's_mov_b32 s{g.sT}, {g.pX}')
        k(f'v_mul_lo_u32 v{a}, v{a}, s{g.sT}'); k(f'v_add_u32 v{a}, v{a}, v{b}'); k(f'v_add_u32 v{g.vXo}, s{sRowByte}, v{a}')
        for j in range(1,g.nXw): k(f'v_add_u32 v{g.vXo+j}, {g.NW*8*g.pX*j}, v{g.vXo}')
        for r_ in range(g.NR):
            pW=g.wreg[r_][1]
            k(f'v_lshrrev_b32 v{a}, 3, v{vtid}'); k(f's_lshl_b32 s{g.sT}, s{sWave}, 3'); k(f'v_add_u32 v{a}, s{g.sT}, v{a}')
            k(f'v_lshrrev_b32 v{b}, 4, v{vtid}'); k(f'v_and_b32 v{b}, 1, v{b}'); k(f'v_lshlrev_b32 v{b}, 2, v{b}')
            k(f'v_xor_b32 v{b}, v{b}, v{c}'); k(f'v_lshlrev_b32 v{b}, 4, v{b}')
            k(f's_mov_b32 s{g.sT}, {pW}')
            k(f'v_mul_lo_u32 v{a}, v{a}, s{g.sT}'); k(f'v_add_u32 v{a}, v{a}, v{b}')
            k(f'v_add_u32 v{g.vWo+r_*g.nWw}, s{sColBytes[r_]}, v{a}')
            for j in range(1,g.nWw): k(f'v_add_u32 v{g.vWo+r_*g.nWw+j}, {g.NW*8*pW*j}, v{g.vWo+r_*g.nWw}')
        k(f'v_and_b32 v{a}, 31, v{vtid}')
        if not g.csplit:
            k(f's_lshl_b32 s{g.sT}, s{sWave}, 5'); k(f'v_add_u32 v{a}, s{g.sT}, v{a}')
        k(f'v_lshrrev_b32 v{b}, 1, v{a}'); k(f'v_and_b32 v{b}, 7, v{b}'); k(f'v_lshrrev_b32 v{c}, 5, v{vtid}')
        k(f'v_xor_b32 v{b}, v{b}, v{c}'); k(f'v_lshlrev_b32 v{b}, 4, v{b}'); k(f'v_lshlrev_b32 v{a}, 7, v{a}')
        k(f'v_add_u32 v{g.vXa}, v{a}, v{b}')
        for ks in range(1,4): k(f'v_xor_b32 v{g.vXa+ks}, {ks<<5}, v{g.vXa}')
        k(f'v_lshlrev_b32 v{a}, 3, v{c}'); k(f'v_and_b32 v{b}, 15, v{vtid}'); k(f'v_lshrrev_b32 v{b}, 2, v{b}'); k(f'v_add_u32 v{a}, v{a}, v{b}')
        k(f'v_lshlrev_b32 v{a}, 7, v{a}')
        k(f'v_lshrrev_b32 v{b}, 4, v{vtid}'); k(f'v_and_b32 v{b}, 1, v{b}'); k(f'v_lshlrev_b32 v{b}, 5, v{b}'); k(f'v_add_u32 v{a}, v{a}, v{b}')
        k(f'v_and_b32 v{b}, 3, v{vtid}'); k(f'v_lshlrev_b32 v{b}, 3, v{b}'); k(f'v_add_u32 v{a}, v{a}, v{b}')
        k(f'v_lshrrev_b32 v{b}, 3, v{vtid}'); k(f'v_and_b32 v{b}, 1, v{b}'); k(f'v_lshlrev_b32 v{b}, 6, v{b}'); k(f'v_add_u32 v{a}, v{a}, v{b}')
        k(f'v_add_u32 v{g.vWa}, {g.XS}, v{a}')
        if g.csplit:
            k(f's_and_b32 s{g.sT}, s{sWave}, 1'); k(f's_lshl_b32 s{g.sT}, s{g.sT}, 6'); k(f'v_xor_b32 v{g.vWa}, s{g.sT}, v{g.vWa}')
            k(f's_lshr_b32 s{g.sT}, s{sWave}, 1'); k(f's_lshl_b32 s{g.sT}, s{g.sT}, 13'); k(f'v_add_u32 v{g.vWa}, s{g.sT}, v{g.vWa}')
        k(f'v_xor_b32 v{g.vWa+1}, 64, v{g.vWa}')
        if g.mod:
            k(f'v_lshlrev_b32 v{g.vT}, 5, v{c}'); k(f'v_add_u32 v{g.vT}, {g.LDS}, v{g.vT}')
        k(f's_lshl_b32 s{g.sM0}, s{sWave}, 10')
        k(f's_mov_b32 s{g.sXo}, 0'); k(f's_mov_b32 s{g.sWo}, 0'); k(f's_mov_b32 s{g.sWo+1}, 0')
        k(f's_mov_b32 s{g.sRd}, 0'); k(f's_mov_b32 s{g.sIt}, 0')
        for i in range(16*g.NT): k(f'v_mov_b32 v{g.acc+i}, 0')
    def dma(g,slot_sgpr=None,slot_imm=0):
        k=g.k
        if slot_sgpr is not None:
            k(f's_add_u32 s{g.sT}, s{g.sM0}, s{slot_sgpr}')
        else:
            k(f's_add_u32 s{g.sT}, s{g.sM0}, {slot_imm}')
        for j in range(g.nXw):
            k(f's_add_u32 m0, s{g.sT}, {j*g.NW*1024}'); k('s_nop 0')
            k(f'buffer_load_dwordx4 v{g.vXo+j}, s[{g.sXsrd}:{g.sXsrd+3}], s{g.sXo} offen lds')
        for r_ in range(g.NR):
            for j in range(g.nWw):
                k(f's_add_u32 m0, s{g.sT}, {g.XS+r_*8192+j*g.NW*1024}'); k('s_nop 0')
                so=g.sWo+(1 if (r_>0 and g.wreg[r_][1]!=g.wreg[0][1]) else 0)
                k(f'buffer_load_dwordx4 v{g.vWo+r_*g.nWw+j}, s[{g.wreg[r_][0]}:{g.wreg[r_][0]+3}], s{so} offen lds')
        if EXP=='same': return
        k(f's_add_u32 s{g.sXo}, s{g.sXo}, 128')
        k(f's_add_u32 s{g.sWo}, s{g.sWo}, {64*g.wreg[0][1]}')
        if EXP=='twice':
            k(f's_cmp_eq_u32 s{g.sXo}, {g.NST//2*128}'); k(f's_cselect_b32 s{g.sXo}, 0, s{g.sXo}'); k(f's_cselect_b32 s{g.sWo}, 0, s{g.sWo}')
    def rd_x(g,ks,b):
        k=g.k
        if g.mod:
            k(f'ds_read_b128 v[{g.raw}:{g.raw+3}], v{g.vXa+ks}')
            k(f'ds_read_b128 v[{g.t1}:{g.t1+3}], v{g.vT} offset:{ks*64}')
            k(f'ds_read_b128 v[{g.t1+4}:{g.t1+7}], v{g.vT} offset:{ks*64+16}')
            k(f'ds_read_b128 v[{g.t0}:{g.t0+3}], v{g.vT} offset:{2560+ks*64}')
            k(f'ds_read_b128 v[{g.t0+4}:{g.t0+7}], v{g.vT} offset:{2560+ks*64+16}')
        else:
            k(f'ds_read_b128 v[{g.fx[b]}:{g.fx[b]+3}], v{g.vXa+ks}')
    def rd_w(g,ks,b):
        k=g.k
        for t in range(g.NT):
            for j in range(2):
                d=g.fw[b]+4*t+2*j
                k(f'ds_read_b64_tr_b16 v[{d}:{d+1}], v{g.vWa+(t&1)} offset:{(t>>1)*8192+(16*ks+4*j)*128}')
    def modulate(g,b):
        o=[]
        for i in range(4):
            o.append(f'v_lshlrev_b32 v{g.tmp+2*i}, 16, v{g.raw+i}')
            o.append(f'v_and_b32 v{g.tmp+2*i+1}, 0xffff0000, v{g.raw+i}')
        for i in range(8): o.append(f'v_fma_f32 v{g.tmp+i}, v{g.tmp+i}, v{g.t1+i}, v{g.t0+i}')
        for i in range(4): o.append(f'v_cvt_pk_bf16_f32 v{g.fx[b]+i}, v{g.tmp+2*i}, v{g.tmp+2*i+1}')
        return o
    def mfma(g,t,b):
        a=g.acc+16*t
        return f'v_mfma_f32_32x32x16_bf16 v[{a}:{a+15}], v[{g.fw[b]+4*t}:{g.fw[b]+4*t+3}], v[{g.fx[b]}:{g.fx[b]+3}], v[{a}:{a+15}]'
    def step(g,ks,last,compute=True,extra=None):
        k=g.k; b=ks&1; nb=b^1
        nrw=2*g.NT
        pre = not(last and ks==3)
        if ks==3 and not last:
            l1=k.nl('w'); l2=k.nl('w')
            k(f's_cmp_lt_u32 s{g.sIt}, {g.NST-g.S+1}')
            k(f's_cbranch_scc1 {l1}'); k('s_waitcnt vmcnt(0)'); k.lab(l1)
            k(f's_waitcnt vmcnt({(g.S-2)*g.n}) lgkmcnt(0)')
            k('s_barrier')
            k(f's_cmp_ge_u32 s{g.sIt}, {g.NST-g.S}'); k(f's_cbranch_scc1 {l2}')
            g.dma(slot_sgpr=g.sRd); k.lab(l2)
            k(f's_add_u32 s{g.sD}, s{g.sRd}, {g.SLOT}'); k(f's_cmp_eq_u32 s{g.sD}, {g.S*g.SLOT}')
            k(f's_cselect_b32 s{g.sD}, 0, s{g.sD}'); k(f's_sub_u32 s{g.sT}, s{g.sD}, s{g.sRd}'); k(f's_mov_b32 s{g.sRd}, s{g.sD}')
            if compute:
                for i in range(4): k(f'v_add_u32 v{g.vXa+i}, s{g.sT}, v{g.vXa+i}')
                for i in range(2): k(f'v_add_u32 v{g.vWa+i}, s{g.sT}, v{g.vWa+i}')
                if g.mod: k(f'v_add_u32 v{g.vT}, 256, v{g.vT}')
        elif compute:
            k('s_waitcnt lgkmcnt(0)')
        if not compute: return
        nks=(ks+1)&3
        if pre:
            g.rd_x(nks,nb)
            if extra: extra(ks,'pre',last)
            g.rd_w(nks,nb)
        ms=[g.mfma(t,b) for t in range(g.NT)]
        if g.mod and pre:
            k(ms[0]); k(ms[1]); k(f's_waitcnt lgkmcnt({nrw})')
            mo=g.modulate(nb)
            for x in mo[:10]: k(x)
            k(ms[2])
            for x in mo[10:]: k(x)
            k(ms[3])
        else:
            for m in ms: k(m)
        if extra: extra(ks,'post',last)
    def run(g,sWave,extra=None,pre_wait=None):
        k=g.k
        for s_ in range(g.S): g.dma(slot_imm=s_*g.SLOT)
        k.ts(1)
        if pre_wait: pre_wait()
        k(f's_waitcnt vmcnt({(g.S-1)*g.n})'); k('s_barrier'); k.ts(2)
        helper=g.NWC<g.NW
        if helper:
            lh=k.nl('help'); ld=k.nl('done')
            k(f's_cmp_ge_u32 s{sWave}, {g.NWC}'); k(f's_cbranch_scc1 {lh}')
        g.rd_x(0,0)
        if extra: extra(-1,'pre',False)
        g.rd_w(0,0)
        if g.mod:
            k(f's_waitcnt lgkmcnt({2*g.NT})')
            for x in g.modulate(0): k(x)
        lp=k.nl('loop'); k.lab(lp)
        for ks in range(4): g.step(ks,False,extra=extra)
        k(f's_add_u32 s{g.sIt}, s{g.sIt}, 1'); k(f's_cmp_lt_u32 s{g.sIt}, {g.NST-1}'); k(f's_cbranch_scc1 {lp}')
        k.ts(3)
        for ks in range(4): g.step(ks,True,extra=extra)
        if helper:
            k(f's_branch {ld}')
            k.lab(lh); lp2=k.nl('hl'); k.lab(lp2)
            g.step(3,False,compute=False)
            k(f's_add_u32 s{g.sIt}, s{g.sIt}, 1'); k(f's_cmp_lt_u32 s{g.sIt}, {g.NST-1}'); k(f's_cbranch_scc1 {lp2}')
            k('s_endpgm')
            k.lab(ld)
        k('s_nop 15'); k.ts(4)
```

```python
from gen_common import *
class G2:
    def __init__(g,k,NWC,NL,NT,NST,S,pitchX,wkind,wreg,vbase,mod=False,csplit=False):
        g.k=k; g.NWC=NWC; g.NL=NL; g.NT=NT; g.NST=NST; g.S=S; g.pX=pitchX; g.wkind=wkind; g.wreg=wreg; g.mod=mod; g.csplit=csplit
        g.nXi=4*(1 if csplit else NWC); g.XS=g.nXi*1024
        g.nWi=8*len(wreg) if wkind=='r128' else 20
        g.SLOT=g.XS+g.nWi*1024; g.LDS=S*g.SLOT
        assert g.nXi%NL==0 and g.nWi%NL==0
        g.nXw=g.nXi//NL; g.nWw=g.nWi//NL; g.n=g.nXw+g.nWw
        r=vbase
        g.acc=r; r+=16*NT
        g.fx=[r,r+4]; r+=8
        g.fw=[r,r+4*NT]; r+=8*NT
        g.vXa=r; r+=4
        g.vWa=r; r+=2
        if mod:
            r=(r+1)//2*2
            g.raw=r; r+=4; g.t1=r; r+=8; g.t0=r; r+=8; g.tmp=r; r+=8; g.vT=r; r+=1
        g.vend=r
        g.vXo=vbase; g.vWo=vbase+g.nXw; g.lend=g.vWo+g.nWw
        g.sM0=40; g.sXo=41; g.sWo=42; g.sLw=43; g.sIt=44; g.sRd=45; g.sD=46; g.sT=47
    def xoffs(g,dst,n,pitch,sBase,vt,vl=1):
        k=g.k; a,b,c=vt,vt+1,vt+2
        k(f'v_lshrrev_b32 v{a}, 3, v{vl}'); k(f's_lshl_b32 s{g.sT}, s{g.sLw}, 3'); k(f'v_add_u32 v{a}, s{g.sT}, v{a}')
        k(f'v_lshrrev_b32 v{b}, 1, v{a}'); k(f'v_and_b32 v{b}, 7, v{b}'); k(f'v_and_b32 v{c}, 7, v{vl}'); k(f'v_xor_b32 v{b}, v{b}, v{c}')
        k(f'v_lshlrev_b32 v{b}, 4, v{b}'); k(f's_mov_b32 s{g.sT}, {pitch}'); k(f'v_mad_u32_u24 v{a}, v{a}, s{g.sT}, v{b}')
        k(f'v_add_u32 v{dst}, s{sBase}, v{a}')
        for j in range(1,n): k(f'v_add_u32 v{dst+j}, {g.NL*8*pitch*j}, v{dst}')
    def lsetup(g,sWave,sXsrd,sRowByte,sCol,vt,vl=1):
        k=g.k; g.sXsrd=sXsrd
        k(f's_sub_u32 s{g.sLw}, s{sWave}, {g.NWC}')
        g.xoffs(g.vXo,g.nXw,g.pX,sRowByte,vt,vl)
        a,b,c=vt,vt+1,vt+2
        if g.wkind=='r128':
            per=8//g.NL if g.NL<=8 else 1
            for r_,(sr_,pW) in enumerate(g.wreg):
                d=g.vWo+r_*per
                if r_==0 or sCol[r_]!=sCol[0]:
                    k(f'v_lshrrev_b32 v{a}, 3, v{vl}'); k(f's_lshl_b32 s{g.sT}, s{g.sLw}, 3'); k(f'v_add_u32 v{a}, s{g.sT}, v{a}')
                    k(f'v_lshrrev_b32 v{b}, 4, v{vl}'); k(f'v_and_b32 v{b}, 1, v{b}'); k(f'v_lshlrev_b32 v{b}, 2, v{b}'); k(f'v_and_b32 v{c}, 7, v{vl}')
                    k(f'v_xor_b32 v{b}, v{b}, v{c}'); k(f'v_lshlrev_b32 v{b}, 4, v{b}'); k(f's_mov_b32 s{g.sT}, {pW}'); k(f'v_mad_u32_u24 v{a}, v{a}, s{g.sT}, v{b}')
                    k(f'v_add_u32 v{d}, s{sCol[r_]}, v{a}')
                    for j in range(1,per): k(f'v_add_u32 v{d+j}, {g.NL*8*pW*j}, v{d}')
                else:
                    for j in range(per): k(f'v_mov_b32 v{d+j}, v{g.vWo+j}')
            g.wl=[(g.vWo+r_*per+j,g.wreg[r_][0],g.XS+r_*8192+j*g.NL*1024) for r_ in range(len(g.wreg)) for j in range(per)]
        else:
            sr_,pW=g.wreg[0]
            k(f's_lshl_b32 s{g.sT}, s{g.sLw}, 10'); k(f'v_lshlrev_b32 v{c}, 4, v{vl}'); k(f'v_add_u32 v{c}, s{g.sT}, v{c}')
            k(f's_mov_b32 s{g.sD}, 52429'); k(f's_mov_b32 s{g.sT}, {pW-320}')
            for j in range(g.nWw):
                k(f'v_add_u32 v{a}, {j*g.NL*1024}, v{c}'); k(f'v_lshrrev_b32 v{b}, 6, v{a}'); k(f'v_mul_u32_u24 v{b}, s{g.sD}, v{b}'); k(f'v_lshrrev_b32 v{b}, 18, v{b}')
                k(f'v_mad_u32_u24 v{a}, v{b}, s{g.sT}, v{a}'); k(f'v_add_u32 v{g.vWo+j}, s{sCol[0]}, v{a}')
            g.wl=[(g.vWo+j,sr_,g.XS+j*g.NL*1024) for j in range(g.nWw)]
        k(f's_lshl_b32 s{g.sM0}, s{g.sLw}, 10')
        k(f's_mov_b32 s{g.sXo}, 0'); k(f's_mov_b32 s{g.sWo}, 0'); k(f's_mov_b32 s{g.sRd}, 0'); k(f's_mov_b32 s{g.sIt}, 0')
    def dma(g,slot_sgpr=None,slot_imm=0):
        k=g.k
        k(f's_add_u32 s{g.sT}, s{g.sM0}, '+(f's{slot_sgpr}' if slot_sgpr is not None else f'{slot_imm}'))
        for j in range(g.nXw):
            k(f's_add_u32 m0, s{g.sT}, {j*g.NL*1024}'); k('s_nop 0')
            k(f'buffer_load_dwordx4 v{g.vXo+j}, s[{g.sXsrd}:{g.sXsrd+3}], s{g.sXo} offen lds')
        for (vr,sr_,lo) in g.wl:
            k(f's_add_u32 m0, s{g.sT}, {lo}'); k('s_nop 0')
            k(f'buffer_load_dwordx4 v{vr}, s[{sr_}:{sr_+3}], s{g.sWo} offen lds')
        if EXP!='same':
            k(f's_add_u32 s{g.sXo}, s{g.sXo}, 128'); k(f's_add_u32 s{g.sWo}, s{g.sWo}, {64*g.wreg[0][1]}')
    def tile_dma(g,vo,n,srd_,lds):
        k=g.k
        for j in range(n):
            k(f's_add_u32 m0, s{g.sM0}, {lds+j*g.NL*1024}'); k('s_nop 0')
            k(f'buffer_load_dwordx4 v{vo+j}, s[{srd_}:{srd_+3}], 0 offen lds')
    def tile_store(g,vo,n,srd_,lds,vd,vl=1):
        k=g.k
        k(f'v_lshlrev_b32 v{vd}, 4, v{vl}'); k(f'v_add_u32 v{vd}, s{g.sM0}, v{vd}')
        D=(vd+1+3)//4*4
        for j in range(n): k(f'ds_read_b128 v[{D+4*j}:{D+4*j+3}], v{vd} offset:{lds+j*g.NL*1024}')
        for j in range(n):
            k(f's_waitcnt lgkmcnt({n-1-j})'); k(f'buffer_store_dwordx4 v[{D+4*j}:{D+4*j+3}], v{vo+j}, s[{srd_}:{srd_+3}], 0 offen')
    def loader(g,first=None,late=None,nlate=0):
        k=g.k
        if first: first()
        for s_ in range(g.S): g.dma(slot_imm=s_*g.SLOT)
        k.ts(1)
        assert (g.S-1)*g.n<=63 and (g.S-2)*g.n+nlate<=63
        k(f's_waitcnt vmcnt({(g.S-1)*g.n})'); k('s_barrier'); k.ts(2)
        lp=k.nl('ll'); k.lab(lp)
        k(f's_waitcnt vmcnt({(g.S-2)*g.n})'); k('s_barrier')
        g.dma(slot_sgpr=g.sRd)
        k(f's_add_u32 s{g.sRd}, s{g.sRd}, {g.SLOT}'); k(f's_cmp_eq_u32 s{g.sRd}, {g.S*g.SLOT}'); k(f's_cselect_b32 s{g.sRd}, 0, s{g.sRd}')
        k(f's_add_u32 s{g.sIt}, s{g.sIt}, 1'); k(f's_cmp_lt_u32 s{g.sIt}, {g.NST-g.S}'); k(f's_cbranch_scc1 {lp}')
        for j in range(g.S-1):
            k(f's_waitcnt vmcnt({(g.S-2-j)*g.n+(nlate if j>=1 else 0)})'); k('s_barrier')
            if j==0 and late: late()
        k.ts(3)
    def free_slot(g,i=0):
        return ((g.NST-g.S+i)%g.S)*g.SLOT
    def csetup(g,sWave,vt,vl=1):
        k=g.k; a,b,c=vt,vt+1,vt+2
        k(f'v_and_b32 v{a}, 31, v{vl}')
        if not g.csplit: k(f's_lshl_b32 s{g.sT}, s{sWave}, 5'); k(f'v_add_u32 v{a}, s{g.sT}, v{a}')
        k(f'v_lshrrev_b32 v{b}, 1, v{a}'); k(f'v_and_b32 v{b}, 7, v{b}'); k(f'v_lshrrev_b32 v{c}, 5, v{vl}')
        k(f'v_xor_b32 v{b}, v{b}, v{c}'); k(f'v_lshlrev_b32 v{b}, 4, v{b}'); k(f'v_lshl_add_u32 v{g.vXa}, v{a}, 7, v{b}')
        for ks in range(1,4): k(f'v_xor_b32 v{g.vXa+ks}, {ks<<5}, v{g.vXa}')
        pit=128 if g.wkind=='r128' else 320
        k(f'v_lshlrev_b32 v{a}, 3, v{c}'); k(f'v_and_b32 v{b}, 15, v{vl}'); k(f'v_lshrrev_b32 v{b}, 2, v{b}'); k(f'v_add_u32 v{a}, v{a}, v{b}')
        k(f'v_mul_u32_u24 v{a}, {pit}, v{a}')
        k(f'v_lshrrev_b32 v{b}, 4, v{vl}'); k(f'v_and_b32 v{b}, 1, v{b}'); k(f'v_lshl_add_u32 v{a}, v{b}, 5, v{a}')
        k(f'v_and_b32 v{b}, 3, v{vl}'); k(f'v_lshl_add_u32 v{a}, v{b}, 3, v{a}')
        if g.wkind=='r128':
            k(f'v_lshrrev_b32 v{b}, 3, v{vl}'); k(f'v_and_b32 v{b}, 1, v{b}'); k(f'v_lshl_add_u32 v{a}, v{b}, 6, v{a}')
        k(f'v_add_u32 v{g.vWa}, {g.XS}, v{a}')
        if g.csplit:
            k(f's_and_b32 s{g.sT}, s{sWave}, 1'); k(f's_lshl_b32 s{g.sT}, s{g.sT}, 6'); k(f'v_xor_b32 v{g.vWa}, s{g.sT}, v{g.vWa}')
            k(f's_lshr_b32 s{g.sT}, s{sWave}, 1'); k(f's_lshl_b32 s{g.sT}, s{g.sT}, 13'); k(f'v_add_u32 v{g.vWa}, s{g.sT}, v{g.vWa}')
        k(f'v_xor_b32 v{g.vWa+1}, 64, v{g.vWa}')
        if g.mod: k(f'v_lshlrev_b32 v{g.vT}, 5, v{c}'); k(f'v_add_u32 v{g.vT}, {g.LDS}, v{g.vT}')
        k(f's_mov_b32 s{g.sRd}, 0'); k(f's_mov_b32 s{g.sIt}, 0')
        for i in range(16*g.NT): k(f'v_mov_b32 v{g.acc+i}, 0')
    def rd_x(g,ks,b):
        k=g.k
        if g.mod:
            k(f'ds_read_b128 v[{g.raw}:{g.raw+3}], v{g.vXa+ks}')
            k(f'ds_read_b128 v[{g.t1}:{g.t1+3}], v{g.vT} offset:{ks*64}'); k(f'ds_read_b128 v[{g.t1+4}:{g.t1+7}], v{g.vT} offset:{ks*64+16}')
            k(f'ds_read_b128 v[{g.t0}:{g.t0+3}], v{g.vT} offset:{2560+ks*64}'); k(f'ds_read_b128 v[{g.t0+4}:{g.t0+7}], v{g.vT} offset:{2560+ks*64+16}')
        else: k(f'ds_read_b128 v[{g.fx[b]}:{g.fx[b]+3}], v{g.vXa+ks}')
    def rd_w(g,ks,b,t):
        o=[]
        for j in range(2):
            d=g.fw[b]+4*t+2*j
            if g.wkind=='r128': o.append(f'ds_read_b64_tr_b16 v[{d}:{d+1}], v{g.vWa+(t&1)} offset:{(t>>1)*8192+(16*ks+4*j)*128}')
            else: o.append(f'ds_read_b64_tr_b16 v[{d}:{d+1}], v{g.vWa} offset:{(16*ks+4*j)*320+t*64}')
        return o
    def modulate(g,b):
        o=[]
        for i in range(4):
            o.append(f'v_lshlrev_b32 v{g.tmp+2*i}, 16, v{g.raw+i}'); o.append(f'v_and_b32 v{g.tmp+2*i+1}, 0xffff0000, v{g.raw+i}')
        for i in range(8): o.append(f'v_fma_f32 v{g.tmp+i}, v{g.tmp+i}, v{g.t1+i}, v{g.t0+i}')
        for i in range(4): o.append(f'v_cvt_pk_bf16_f32 v{g.fx[b]+i}, v{g.tmp+2*i}, v{g.tmp+2*i+1}')
        return o
    def mfma(g,t,b):
        a=g.acc+16*t
        return f'v_mfma_f32_32x32x16_bf16 v[{a}:{a+15}], v[{g.fw[b]+4*t}:{g.fw[b]+4*t+3}], v[{g.fx[b]}:{g.fx[b]+3}], v[{a}:{a+15}]'
    def step(g,ks,last):
        k=g.k; b=ks&1; nb=b^1; pre=not(last and ks==3)
        k('s_waitcnt lgkmcnt(0)')
        if ks==3 and not last:
            k('s_barrier')
            k(f's_add_u32 s{g.sD}, s{g.sRd}, {g.SLOT}'); k(f's_cmp_eq_u32 s{g.sD}, {g.S*g.SLOT}')
            k(f's_cselect_b32 s{g.sD}, 0, s{g.sD}'); k(f's_sub_u32 s{g.sT}, s{g.sD}, s{g.sRd}'); k(f's_mov_b32 s{g.sRd}, s{g.sD}')
            k(g.mfma(0,b))
            for i in range(4): k(f'v_add_u32 v{g.vXa+i}, s{g.sT}, v{g.vXa+i}')
            for i in range(2 if g.wkind=='r128' else 1): k(f'v_add_u32 v{g.vWa+i}, s{g.sT}, v{g.vWa+i}')
            if g.mod: k(f'v_add_u32 v{g.vT}, 256, v{g.vT}')
            ms=[g.mfma(t,b) for t in range(1,g.NT)]
        else: ms=[g.mfma(t,b) for t in range(g.NT)]
        if not pre:
            for m in ms: k(m)
            return
        nks=(ks+1)&3
        rw=[x for t in range(g.NT) for x in g.rd_w(nks,nb,t)]
        if g.mod:
            g.rd_x(nks,nb)
            m=ms.pop(0); k(m)
            for x in rw[:4]: k(x)
            if ms: k(ms.pop(0))
            for x in rw[4:]: k(x)
            k(f's_waitcnt lgkmcnt({len(rw)})')
            mo=g.modulate(nb); per=(len(mo)+len(ms))//(len(ms)+1) if ms else len(mo)
            i=0
            for m in ms:
                for x in mo[i:i+6]: k(x)
                i+=6; k(m)
            for x in mo[i:]: k(x)
        else:
            g.rd_x(nks,nb)
            per=(len(rw)+len(ms)-1)//max(1,len(ms))
            i=0
            for m in ms:
                k(m)
                for x in rw[i:i+per]: k(x)
                i+=per
            for x in rw[i:]: k(x)
    def compute(g):
        k=g.k
        k('s_barrier'); k.ts(2)
        g.rd_x(0,0)
        for t in range(g.NT):
            for x in g.rd_w(0,0,t): k(x)
        if g.mod:
            k(f's_waitcnt lgkmcnt({2*g.NT})')
            for x in g.modulate(0): k(x)
        lp=k.nl('loop'); k.lab(lp)
        for ks in range(4): g.step(ks,False)
        k(f's_add_u32 s{g.sIt}, s{g.sIt}, 1'); k(f's_cmp_lt_u32 s{g.sIt}, {g.NST-1}'); k(f's_cbranch_scc1 {lp}')
        k.ts(3)
        for ks in range(4): g.step(ks,True)
        k('s_nop 15'); k.ts(4)
```

```python
from gen_common import *
import os
def guard(k,n):
    k(f's_cmp_ge_u32 s2, {n}'); k(f's_cbranch_scc1 {k.label_[:2]}_END')
def endk(k):
    k.lab(f'{k.label_[:2]}_END'); k('s_endpgm')
def lane_wave(k,vl,sw):
    k(f'v_lshrrev_b32 v{vl}, 6, v0'); k('s_nop 0'); k(f'v_readfirstlane_b32 s{sw}, v{vl}'); k(f'v_and_b32 v{vl}, 63, v0'); k('s_nop 3')

def p0():
    k=K('p0_kernel'); guard(k,256); k.ts(0)
    ldptr(k,4,0); ldptr(k,6,7); ldptr(k,8,8); ldptr(k,10,11)
    lane_wave(k,1,3)
    k('s_waitcnt lgkmcnt(0)')
    srd(k,12,4,0,XB)
    srd(k,16,6,0,1280)
    srd(k,20,8,0,640*7680)
    srd(k,24,10,WS_MOD,0x8000)
    srd(k,28,10,WS_XH,XB)
    k('''s_lshl_b32 s33, s2, 3
    s_lshl_b32 s34, s3, 2
    s_add_u32 s33, s33, s34
    v_lshrrev_b32 v2, 4, v1
    v_add_u32 v2, s33, v2
    s_movk_i32 s34, 1280
    v_mul_lo_u32 v2, v2, s34
    v_and_b32 v3, 15, v1
    v_lshlrev_b32 v3, 4, v3
    v_add_u32 v2, v2, v3''')
    k('s_cmp_ge_u32 s3, 2'); k('s_cbranch_scc1 p0_noln1')
    for i in range(5): k(f'buffer_load_dwordx4 v[{40+4*i}:{43+4*i}], v2, s[12:15], 0 offen offset:{256*i}')
    k.lab('p0_noln1')
    k('s_cmp_ge_u32 s2, 240'); k('s_cbranch_scc1 p0_nomod')
    k('''s_and_b32 s35, s2, 7
    s_mul_i32 s35, s35, 30
    s_lshr_b32 s36, s2, 3
    s_add_u32 s35, s35, s36
    s_lshl_b32 s36, s35, 5
    v_lshrrev_b32 v4, 1, v0
    v_and_b32 v5, 1, v0
    v_lshlrev_b32 v5, 4, v5
    s_movk_i32 s37, 7680
    v_mul_lo_u32 v6, v4, s37
    v_add_u32 v6, v6, v5
    v_add_u32 v6, s36, v6
    v_lshlrev_b32 v7, 1, v4''')
    for i in range(5):
        k(f's_mov_b32 s38, {i*128*7680}')
        k(f'buffer_load_dwordx4 v[{8+4*i}:{11+4*i}], v6, s[20:23], s38 offen')
        k(f'buffer_load_ushort v{28+i}, v7, s[16:19], 0 offen offset:{256*i}')
    k('s_waitcnt vmcnt(0)')
    k('s_mov_b32 s38, 0xbfb8aa3b')
    for i in range(5):
        r=28+i
        k(f'''v_lshlrev_b32 v{r}, 16, v{r}
        v_mul_f32 v33, s38, v{r}
        v_exp_f32 v33, v33
        s_nop 0
        v_add_f32 v33, 1.0, v33
        v_rcp_f32 v33, v33
        s_nop 0
        v_mul_f32 v{r}, v{r}, v33
        v_cvt_pk_bf16_f32 v{r}, v{r}, v{r}
        v_lshlrev_b32 v{r}, 16, v{r}''')
    for j in range(8): k(f'v_mov_b32 v{60+j}, 0')
    for i in range(5):
        for d in range(4):
            w=8+4*i+d
            k(f'v_lshlrev_b32 v33, 16, v{w}'); k(f'v_and_b32 v34, 0xffff0000, v{w}')
            k(f'v_fmac_f32 v{60+2*d}, v33, v{28+i}'); k(f'v_fmac_f32 v{61+2*d}, v34, v{28+i}')
    for sh in (2,4,8):
        k('s_nop 1')
        for j in range(8): k(f'v_add_f32_dpp v{60+j}, v{60+j}, v{60+j} row_ror:{sh} row_mask:0xf bank_mask:0xf')
    k('''v_lshrrev_b32 v33, 4, v0
    v_lshlrev_b32 v33, 6, v33
    v_and_b32 v34, 1, v0
    v_lshlrev_b32 v34, 5, v34
    v_add_u32 v33, v33, v34
    v_and_b32 v34, 15, v0
    v_cmp_gt_u32 vcc, 2, v34
    s_and_saveexec_b64 s[38:39], vcc
    ds_write_b128 v33, v[60:63]
    ds_write_b128 v33, v[64:67] offset:16
    s_mov_b64 exec, s[38:39]
    s_waitcnt lgkmcnt(0)
    s_barrier''')
    k('s_cmp_lg_u32 s3, 0'); k('s_cbranch_scc1 p0_nomod')
    k('v_and_b32 v34, 15, v1'); k('v_lshlrev_b32 v33, 2, v34')
    for p in range(16): k(f'ds_read_b32 v{60+p}, v33 offset:{p*64}')
    k('s_waitcnt lgkmcnt(0)')
    for st in (8,4,2,1):
        for p in range(st): k(f'v_add_f32 v{60+p}, v{60+p}, v{60+p+st}')
    k('''v_cvt_pk_bf16_f32 v60, v60, v60
    v_lshlrev_b32 v60, 16, v60
    s_mul_i32 s37, s35, 1639
    s_lshr_b32 s37, s37, 16
    s_cmp_eq_u32 s37, 1
    s_cselect_b32 s38, 1, 0
    s_cmp_eq_u32 s37, 4
    s_cselect_b32 s38, 1, s38
    s_cmp_eq_u32 s38, 0
    s_cbranch_scc1 p0_m1
    v_add_f32 v60, 1.0, v60
    v_cvt_pk_bf16_f32 v60, v60, v60
    v_lshlrev_b32 v60, 16, v60''')
    k.lab('p0_m1')
    k('''s_lshl_b32 s36, s35, 6
    v_add_u32 v33, s36, v33
    v_cmp_gt_u32 vcc, 16, v1
    s_and_saveexec_b64 s[40:41], vcc
    buffer_store_dword v60, v33, s[24:27], 0 offen
    s_cmp_lt_u32 s37, 3
    s_cbranch_scc1 p0_m2
    s_cmp_eq_u32 s37, 5
    s_cbranch_scc1 p0_m2
    s_cmp_eq_u32 s37, 3
    s_cselect_b32 s38, 1280, 0
    s_mul_i32 s39, s37, 1280
    s_lshl_b32 s36, s35, 5
    s_sub_u32 s36, s36, s39
    s_add_u32 s36, s36, s38
    s_add_u32 s36, s36, 0x4000
    v_lshlrev_b32 v33, 1, v34
    v_add_u32 v33, s36, v33
    v_lshrrev_b32 v60, 16, v60
    buffer_store_short v60, v33, s[24:27], 0 offen''')
    k.lab('p0_m2')
    k('s_mov_b64 exec, s[40:41]')
    k.lab('p0_nomod')
    k.ts(1); k('s_cmp_ge_u32 s3, 2'); k('s_cbranch_scc1 p0_END')
    k('s_waitcnt vmcnt(0)'); k.ts(2)
    for i in range(20):
        k(f'v_lshlrev_b32 v{80+2*i}, 16, v{40+i}'); k(f'v_and_b32 v{81+2*i}, 0xffff0000, v{40+i}')
    for j in range(4): k(f'v_add_f32 v{70+j}, v{80+j}, v{84+j}')
    for i in range(8,40): k(f'v_add_f32 v{70+(i&3)}, v{70+(i&3)}, v{80+i}')
    k('v_add_f32 v70, v70, v71'); k('v_add_f32 v72, v72, v73'); k('v_add_f32 v70, v70, v72')
    for sh in (1,2,4,8):
        k('s_nop 1'); k(f'v_add_f32_dpp v70, v70, v70 row_ror:{sh} row_mask:0xf bank_mask:0xf')
    k('s_mov_b32 s38, 0x3acccccd')
    k('v_mul_f32 v70, s38, v70')
    for i in range(40): k(f'v_sub_f32 v{80+i}, v{80+i}, v70')
    for j in range(4): k(f'v_mul_f32 v{72+j}, v{80+j}, v{80+j}')
    for i in range(4,40): k(f'v_fmac_f32 v{72+(i&3)}, v{80+i}, v{80+i}')
    k('v_add_f32 v72, v72, v73'); k('v_add_f32 v74, v74, v75'); k('v_add_f32 v72, v72, v74')
    for sh in (1,2,4,8):
        k('s_nop 1'); k(f'v_add_f32_dpp v72, v72, v72 row_ror:{sh} row_mask:0xf bank_mask:0xf')
    k('''v_mov_b32 v73, 0x3727c5ac
    v_fmac_f32 v73, s38, v72
    v_rsq_f32 v73, v73
    s_nop 0''')
    for i in range(40): k(f'v_mul_f32 v{80+i}, v{80+i}, v73')
    for i in range(20): k(f'v_cvt_pk_bf16_f32 v{40+i}, v{80+2*i}, v{81+2*i}')
    for i in range(5): k(f'buffer_store_dwordx4 v[{40+4*i}:{43+4*i}], v2, s[28:31], 0 offen offset:{256*i}')
    k.ts(5); k.tsdump(0,6,10)
    endk(k)
    return k.text(128),'grid=(256,1,1) block=(256,1,1) lds=1024'

def p1():
    k=K('p1_kernel'); guard(k,240); k.ts(0)
    ldptr(k,4,1); ldptr(k,6,11)
    lane_wave(k,1,3)
    k('''s_lshr_b32 s33, s2, 3
    s_cmp_ge_u32 s33, 15
    s_cselect_b32 s34, 1, 0
    s_cselect_b32 s35, 15, 0
    s_sub_u32 s33, s33, s35
    s_and_b32 s35, s2, 7
    s_lshl_b32 s35, s35, 1
    s_add_u32 s34, s34, s35''')
    k('s_waitcnt lgkmcnt(0)')
    srd(k,8,6,WS_XH,XB); srd(k,12,4,0,640*3840); srd(k,16,6,WS_MOD,15360)
    g=Gemm(k,4,4,4,10,int(os.environ.get('S1',3)),1280,[(12,3840),(12,3840)],vbase=16,mod=True)
    k(f's_mul_i32 s36, s34, {128*1280}')
    k('s_lshl_b32 s37, s33, 8'); k('s_add_u32 s38, s37, 128')
    g.setup(1,3,8,36,[37,38],2)
    k(f'''v_lshlrev_b32 v2, 4, v0
    s_lshl_b32 s39, s3, 10
    v_cmp_gt_u32 vcc, 160, v0
    s_and_saveexec_b64 s[48:49], vcc
    s_cbranch_execz p1_nt
    s_add_u32 m0, s39, {g.LDS}
    s_movk_i32 s50, 2560
    buffer_load_dwordx4 v2, s[16:19], s50 offen lds
    s_add_u32 m0, s39, {g.LDS+2560}
    s_nop 0
    buffer_load_dwordx4 v2, s[16:19], 0 offen lds''')
    k.lab('p1_nt'); k('s_mov_b64 exec, s[48:49]')
    OF=g.vend; assert OF+16<=250
    def pre():
        k('''s_mul_i32 s51, s33, 52
        s_lshr_b32 s51, s51, 8
        s_mul_i32 s52, s51, 5
        s_sub_u32 s52, s33, s52
        s_lshl_b32 s52, s52, 5
        s_cmp_eq_u32 s51, 2
        s_cselect_b32 s53, 48, 40''')
        k(f's_mul_i32 s54, s51, {WS_K-WS_Q}'); k(f's_add_u32 s54, s54, {WS_Q}')
        k('s_add_u32 s20, s6, s54'); k('s_addc_u32 s21, s7, 0'); k('s_lshl_b32 s22, s53, 16'); k('s_mov_b32 s23, 0x00020000')
        k('''s_lshl_b32 s55, s53, 11
        s_sub_u32 s55, s55, 40
        s_lshl_b32 s56, s34, 7
        s_lshl_b32 s57, s3, 5
        s_add_u32 s56, s56, s57
        v_and_b32 v2, 31, v1
        v_add_u32 v2, s56, v2
        v_mul_lo_u32 v2, v2, s53
        v_lshrrev_b32 v3, 5, v1
        v_add_u32 v3, s52, v3
        s_mov_b32 s57, 52429''')
        for t in range(4):
            for rg in range(4):
                o=OF+4*t+rg
                k(f'v_add_u32 v4, {8*t+2*rg}, v3'); k(f'v_mul_u32_u24 v5, s57, v4'); k('v_lshrrev_b32 v5, 18, v5')
                k('v_lshl_add_u32 v4, v4, 3, v2'); k(f'v_mad_u32_u24 v{o}, v5, s55, v4')
    g.run(3,pre_wait=pre)
    k('s_cmp_lg_u32 s51, 0'); k('s_cbranch_scc1 p1_nsc'); k('s_mov_b32 s58, 0x3ea52b5c')
    for i in range(64): k(f'v_mul_f32 v{g.acc+i}, s58, v{g.acc+i}')
    k.lab('p1_nsc')
    for t in range(4):
        for rg in range(4):
            a=g.acc+16*t+4*rg; d=2+2*((4*t+rg)%6)
            k(f'v_cvt_pk_bf16_f32 v{d}, v{a}, v{a+1}'); k(f'v_cvt_pk_bf16_f32 v{d+1}, v{a+2}, v{a+3}')
            k(f'buffer_store_dwordx2 v[{d}:{d+1}], v{OF+4*t+rg}, s[20:23], 0 offen')
    k.ts(5); k.tsdump(1,6,6)
    endk(k)
    return k.text(256),f'grid=(240,1,1) block=(256,1,1) lds={g.LDS+5120}'
```

```python
from gen_common import *
from gen_p01 import guard,endk,lane_wave
def p2():
    k=K('p2_kernel'); guard(k,256); k.ts(0)
    ldptr(k,6,11)
    lane_wave(k,1,3)
    KB=0; VB=20480
    S=lambda b:64+16*b
    Q0,Q1=8,12; KA=[16,24]; KBf=[20,28]; O=32; VF=[48,56]; P=[208,216]; PM=224; M=232; ONE=240; MB=244; T=248
    k('''s_and_b32 s33, s2, 7
    s_lshl_b32 s33, s33, 2
    s_lshr_b32 s34, s2, 3
    s_and_b32 s34, s34, 3
    s_add_u32 s33, s33, s34
    s_lshr_b32 s34, s2, 5
    s_waitcnt lgkmcnt(0)''')
    srd(k,8,6,WS_Q,32*2048*40); srd(k,12,6,WS_K,32*2048*40); srd(k,16,6,WS_V,32*2048*48); srd(k,20,6,WS_O,XB)
    k('''s_mul_i32 s36, s33, 81920
    s_mul_i32 s39, s34, 10240
    s_add_u32 s36, s36, s39
    s_cmp_eq_u32 s34, 0
    s_cselect_b32 s39, 0, 10240
    s_sub_u32 s35, s36, s39
    s_mul_i32 s38, s33, 98304
    s_mul_i32 s39, s34, 12288
    s_add_u32 s38, s38, s39
    s_cmp_eq_u32 s34, 0
    s_cselect_b32 s39, 0, 12288
    s_sub_u32 s37, s38, s39
    v_lshlrev_b32 v2, 4, v1''')
    def dma(i_expr_j,half,srd_,sa,sb,ldsb):
        k(f's_add_u32 s40, s3, {8*i_expr_j}')
        k(f's_lshl_b32 s41, s40, 10')
        k(f's_add_u32 m0, s41, {ldsb}')
        k(f's_cmp_lt_u32 s40, {half}')
        k(f's_cselect_b32 s42, s{sa}, s{sb}'); k(f's_cselect_b32 s43, 0, {half*1024}')
        k('s_add_u32 s42, s42, s41'); k('s_sub_u32 s42, s42, s43')
        k(f'buffer_load_dwordx4 v2, s[{srd_}:{srd_+3}], s42 offen lds')
    dma(0,10,12,35,36,KB); dma(1,10,12,35,36,KB)
    k('s_cmp_ge_u32 s3, 4'); k('s_cbranch_scc1 p2_k3'); dma(2,10,12,35,36,KB); k.lab('p2_k3')
    for j in range(3): dma(j,12,16,37,38,VB)
    k(f'''s_lshl_b32 s40, s33, 11
    s_lshl_b32 s41, s34, 8
    s_add_u32 s40, s40, s41
    s_lshl_b32 s42, s3, 5
    s_add_u32 s40, s40, s42
    s_add_u32 s44, s41, s42
    v_and_b32 v3, 31, v1
    v_lshrrev_b32 v4, 5, v1
    v_add_u32 v5, s40, v3
    v_mul_u32_u24 v5, 40, v5
    v_lshl_add_u32 v6, v4, 4, v5
    buffer_load_dwordx2 v[{Q0}:{Q0+1}], v6, s[8:11], 0 offen
    buffer_load_dwordx2 v[{Q0+2}:{Q0+3}], v6, s[8:11], 0 offen offset:8
    buffer_load_dwordx2 v[{Q1}:{Q1+1}], v5, s[8:11], 0 offen offset:32''')
    k('''v_add_u32 v7, s44, v3
    v_mul_u32_u24 v7, 1280, v7
    s_mul_i32 s45, s33, 40
    v_add_u32 v7, s45, v7
    v_lshl_add_u32 v7, v4, 3, v7''')
    k('v_lshlrev_b32 v5, 2, v4'); k('v_sub_u32 v5, v3, v5')
    for r in range(16): k(f'v_cmp_gt_i32 s[{60+2*r}:{61+2*r}], {8*(r>>2)+(r&3)}, v5')
    k(f'v_mov_b32 v{T}, 0xffff'); k(f'v_mov_b32 v{T+1}, 0xffff0000')
    for u in range(8):
        k(f'v_cndmask_b32 v{M+u}, 0, v{T}, s[{60+4*u}:{61+4*u}]'); k(f'v_cndmask_b32 v{T+2}, 0, v{T+1}, s[{62+4*u}:{63+4*u}]')
        k(f'v_or_b32 v{M+u}, v{M+u}, v{T+2}')
    k(f'''s_mul_i32 s46, s3, 1280
    v_mul_u32_u24 v{T}, 40, v3
    v_add_u32 v{T}, s46, v{T}
    v_add_u32 v{T+1}, 32, v{T}
    v_lshl_add_u32 v{T}, v4, 4, v{T}''')
    VKA,VKB,VVA=252,253,254
    k(f'v_mov_b32 v{VKA}, v{T}'); k(f'v_mov_b32 v{VKB}, v{T+1}')
    k(f'''s_lshl_b32 s46, s3, 5
    v_and_b32 v{T}, 15, v1
    v_lshrrev_b32 v{T}, 2, v{T}
    v_lshl_add_u32 v{T}, v4, 2, v{T}
    v_add_u32 v{T}, s46, v{T}
    v_mul_u32_u24 v{T}, 48, v{T}
    v_lshrrev_b32 v{T+1}, 4, v1
    v_and_b32 v{T+1}, 1, v{T+1}
    v_lshl_add_u32 v{T}, v{T+1}, 5, v{T}
    v_and_b32 v{T+1}, 3, v1
    v_lshl_add_u32 v{T}, v{T+1}, 3, v{T}
    v_add_u32 v{VVA}, {VB}, v{T}''')
    for b in range(2): k(f'v_mov_b32 v{KBf[b]+2}, 0'); k(f'v_mov_b32 v{KBf[b]+3}, 0')
    k(f'v_mov_b32 v{ONE}, 0x3f803f80'); k(f'v_mov_b32 v{ONE+1}, 0x3f80'); k(f'v_mov_b32 v{ONE+2}, 0'); k(f'v_mov_b32 v{ONE+3}, 0')
    k(f'v_mov_b32 v{MB+2}, 0'); k(f'v_mov_b32 v{MB+3}, 0'); k(f'v_mov_b32 v{Q1+2}, 0'); k(f'v_mov_b32 v{Q1+3}, 0')
    for i in range(16): k(f'v_mov_b32 v{O+i}, 0')
    k('s_cmp_eq_u32 s34, 0'); k('s_cselect_b32 s47, 8, 0'); k('s_sub_u32 s48, s47, s3'); k('s_cmp_eq_u32 s34, 0'); k('s_cselect_b32 s47, s48, 0')
    k('v_cmp_eq_u32 s[58:59], 0, v4')
    k(f'v_mul_u32_u24 v{T}, 48, v0'); k(f'v_mov_b32 v{T+2}, 0x3f80'); k(f'v_mov_b32 v{T+3}, 0')
    k.ts(1); k('s_waitcnt vmcnt(0)'); k('s_barrier'); k.ts(2)
    k(f'ds_write_b64 v{T}, v[{T+2}:{T+3}] offset:{VB+40}')
    k(f'v_cndmask_b32 v{Q1}, 0, v{Q1}, s[58:59]'); k(f'v_cndmask_b32 v{Q1+1}, 0, v{Q1+1}, s[58:59]')
    def rdk(b):
        s_=b&1
        k(f'ds_read_b64 v[{KBf[s_]}:{KBf[s_]+1}], v{VKB} offset:{KB+b*1280}')
        k(f'ds_read_b64 v[{KA[s_]}:{KA[s_]+1}], v{VKA} offset:{KB+b*1280}')
        k(f'ds_read_b64 v[{KA[s_]+2}:{KA[s_]+3}], v{VKA} offset:{KB+b*1280+8}')
    MX=[2,5,6,T]
    first=[True]*4
    def mx(b):
        for i in range(8):
            c=i&3; a=S(b)+2*i
            if first[c]: k(f'v_max_f32 v{MX[c]}, v{a}, v{a+1}'); first[c]=False
            else: k(f'v_max3_f32 v{MX[c]}, v{MX[c]}, v{a}, v{a+1}')
    fills=[]
    rdk(0)
    for b in range(9):
        if b<8: rdk(b+1); k('s_waitcnt lgkmcnt(3)')
        else: k('s_waitcnt lgkmcnt(0)')
        s_=b&1
        if b<8: k(f's_cmp_gt_u32 s47, {b}'); k(f's_cbranch_scc1 p2_fill{b}'); fills.append(b)
        k(f'v_mfma_f32_32x32x16_bf16 v[{S(b)}:{S(b)+15}], v[{KBf[s_]}:{KBf[s_]+3}], v[{Q1}:{Q1+3}], 0')
        k(f'v_mfma_f32_32x32x16_bf16 v[{S(b)}:{S(b)+15}], v[{KA[s_]}:{KA[s_]+3}], v[{Q0}:{Q0+3}], v[{S(b)}:{S(b)+15}]')
        if b<8: k.lab(f'p2_back{b}')
        if b>=3: mx(b-2)
    k.ts(3); k('s_barrier')
    def rdv(kb,s_):
        for st in range(2):
            for u in range(2):
                d=VF[s_]+4*st+2*u
                k(f'ds_read_b64_tr_b16 v[{d}:{d+1}], v{VVA} offset:{kb*1536+st*768+u*384}')
    rdv(0,0)
    mx(7)
    k('s_nop 3')
    for r in range(16): k(f'v_cndmask_b32 v{S(0)+r}, v{S(8)+r}, v{S(0)+r}, s[{60+2*r}:{61+2*r}]')
    mx(0)
    k(f'v_max3_f32 v2, v2, v5, v6'); k(f'v_max_f32 v2, v2, v{T}'); k('v_mov_b32 v5, v2'); k('s_nop 1')
    k('v_permlane32_swap_b32 v2, v5'); k('s_nop 1'); k('v_max_f32 v2, v2, v5')
    k(f'''v_sub_f32 v2, 0, v2
    v_and_b32 v5, 0xffff0000, v2
    v_sub_f32 v2, v2, v5
    v_and_b32 v6, 0xffff0000, v2
    v_sub_f32 v2, v2, v6
    v_lshrrev_b32 v5, 16, v5
    v_or_b32 v5, v5, v6
    v_lshrrev_b32 v2, 16, v2
    v_cndmask_b32 v{MB}, 0, v5, s[58:59]
    v_cndmask_b32 v{MB+1}, 0, v2, s[58:59]
    s_nop 1''')
    def sub(b): k(f'v_mfma_f32_32x32x16_bf16 v[{S(b)}:{S(b)+15}], v[{ONE}:{ONE+3}], v[{MB}:{MB+3}], v[{S(b)}:{S(b)+15}]')
    sub(0); sub(1); k('s_nop 7')
    def pv(vs,st,p): k(f'v_mfma_f32_32x32x16_bf16 v[{O}:{O+15}], v[{VF[vs]+4*st}:{VF[vs]+4*st+3}], v[{p+4*st}:{p+4*st+3}], v[{O}:{O+15}]')
    vs=0
    for b in range(8):
        p=P[b&1]
        if b+2<8: sub(b+2)
        nxt = 8 if b==0 else (b+1 if b<7 else None)
        if nxt is not None: rdv(nxt,vs^1)
        for i in range(16): k(f'v_exp_f32 v{S(b)+i}, v{S(b)+i}')
        k('s_nop 0')
        for u in range(8): k(f'v_cvt_pk_bf16_f32 v{p+u}, v{S(b)+2*u}, v{S(b)+2*u+1}')
        if b==0:
            for u in range(8): k(f'v_bfi_b32 v{PM+u}, v{M+u}, 0, v{p+u}')
            for u in range(8): k(f'v_and_b32 v{p+u}, v{M+u}, v{p+u}')
            k('s_waitcnt lgkmcnt(4)'); pv(vs,0,p); pv(vs,1,p); vs^=1
            rdv(1,vs^1)
            k('s_waitcnt lgkmcnt(4)'); pv(vs,0,PM); pv(vs,1,PM); vs^=1
        else:
            k('s_nop 0')
            k(f's_waitcnt lgkmcnt({4 if nxt is not None else 0})'); pv(vs,0,p); pv(vs,1,p); vs^=1
    k('s_nop 15'); k.ts(4)
    k(f'v_mov_b32 v2, v{O+8}'); k(f'v_mov_b32 v5, v{O+8}'); k('s_nop 1'); k('v_permlane32_swap_b32 v2, v5'); k('s_nop 1')
    k('v_rcp_f32 v5, v5'); k('s_nop 0')
    for i in range(12): k(f'v_mul_f32 v{O+i}, v{O+i}, v5')
    for i in range(6): k(f'v_cvt_pk_bf16_f32 v{48+i}, v{O+2*i}, v{O+2*i+1}')
    k('buffer_store_dwordx2 v[48:49], v7, s[20:23], 0 offen'); k('buffer_store_dwordx2 v[50:51], v7, s[20:23], 0 offen offset:16')
    k('s_mov_b64 exec, s[58:59]'); k('buffer_store_dwordx2 v[52:53], v7, s[20:23], 0 offen offset:32')
    k('s_mov_b64 exec, -1'); k.ts(5); k.tsdump(2,6,6)
    k('s_endpgm')
    for b in fills:
        k.lab(f'p2_fill{b}')
        for i in range(16): k(f'v_mov_b32 v{S(b)+i}, 0xff800000')
        k(f's_branch p2_back{b}')
    endk(k)
    return k.text(256),'grid=(256,1,1) block=(512,1,1) lds=45312'
```

```python
from gen_common import *
from gen_p01 import guard,endk,lane_wave
import os
S3=int(os.environ.get('S3',4)); S5=int(os.environ.get('S5',4))
def rbcb(k,sid,srb,scb,n):
    k(f'''s_and_b32 s33, s2, 7
    s_mul_i32 s33, s33, 28
    s_lshr_b32 s34, s2, 3
    s_add_u32 s33, s33, s34
    s_cmp_ge_u32 s33, 220
    s_cbranch_scc1 {k.label_[:2]}_END
    s_mul_i32 s34, s33, 6554
    s_lshr_b32 s34, s34, 16
    s_mul_i32 s35, s34, 10
    s_sub_u32 s{scb}, s33, s35
    s_mul_i32 s34, s34, 96
    s_min_u32 s{srb}, s34, 1952''')
def rowoff(k,vd,srow0,pitch,vt):
    k(f's_lshl_b32 s59, s3, 5'); k(f's_add_u32 s59, s59, s{srow0}'); k(f'v_and_b32 v{vt}, 31, v1'); k(f'v_add_u32 v{vt}, s59, v{vt}')
    k(f's_movk_i32 s59, {pitch}'); k(f'v_mul_lo_u32 v{vd}, v{vt}, s59')
def p3():
    k=K('p3_kernel'); guard(k,251); k.ts(0)
    ldptr(k,4,2); ldptr(k,6,11); ldptr(k,24,0); ldptr(k,26,4); ldptr(k,28,5)
    lane_wave(k,1,3)
    k('s_cmp_ge_u32 s2, 224'); k('s_cbranch_scc1 p3_special')
    rbcb(k,2,60,61,220)
    k('s_waitcnt lgkmcnt(0)')
    srd(k,8,6,WS_O,XB); srd(k,12,4,0,640*1280); srd(k,16,6,WS_MOD,15360); srd(k,20,24,0,XB)
    srd(k,64,6,WS_X2,XB); srd(k,68,6,WS_Y2,XB); srd(k,72,6,WS_ST,2048*160)
    g=Gemm(k,4,3,2,10,S3,1280,[(12,1280)],vbase=16)
    k('s_mul_i32 s36, s60, 1280'); k('s_lshl_b32 s37, s61, 7')
    g.setup(1,3,8,36,[37],2)
    R=g.vend; R=(R+3)//4*4
    XV=R; GA=R+16; S2=GA+32; VO=S2+32; VS=VO+1; VM=VO+2
    rowoff(k,VO,60,1280,2)
    k(f'v_lshrrev_b32 v3, 5, v1'); k(f'v_lshlrev_b32 v4, 3, v3'); k(f'v_add_u32 v{VO}, v{VO}, v4'); k(f'v_add_u32 v{VO}, s37, v{VO}')
    k(f'v_mul_u32_u24 v{VS}, 160, v2'); k(f's_lshl_b32 s38, s61, 4'); k(f'v_add_u32 v{VS}, s38, v{VS}'); k(f'v_add_u32 v{VS}, v{VS}, v4')
    k(f'v_lshlrev_b32 v{VM}, 4, v3'); k('s_lshl_b32 s38, s61, 8'); k(f'v_add_u32 v{VM}, s38, v{VM}')
    for t in range(2):
        for rg in range(4):
            i=4*t+rg
            k(f'buffer_load_dwordx2 v[{XV+2*i}:{XV+2*i+1}], v{VO}, s[20:23], 0 offen offset:{t*64+rg*16}')
            k(f's_movk_i32 s38, {2*2560}'); k(f'buffer_load_dwordx4 v[{GA+4*i}:{GA+4*i+3}], v{VM}, s[16:19], s38 offen offset:{t*128+rg*32}')
            k(f's_movk_i32 s38, {4*2560}'); k(f'buffer_load_dwordx4 v[{S2+4*i}:{S2+4*i+3}], v{VM}, s[16:19], s38 offen offset:{t*128+rg*32}')
    g.run(3)
    for i in range(8):
        for e in range(2):
            x=XV+2*i+e
            k(f'v_lshlrev_b32 v2, 16, v{x}'); k(f'v_and_b32 v3, 0xffff0000, v{x}')
            k(f'v_fma_f32 v{g.acc+4*i+2*e}, v{g.acc+4*i+2*e}, v{GA+4*i+2*e}, v2'); k(f'v_fma_f32 v{g.acc+4*i+2*e+1}, v{g.acc+4*i+2*e+1}, v{GA+4*i+2*e+1}, v3')
    for i in range(8):
        a=g.acc+4*i; t,rg=i>>2,i&3
        k(f'v_cvt_pk_bf16_f32 v{XV+2*i}, v{a}, v{a+1}'); k(f'v_cvt_pk_bf16_f32 v{XV+2*i+1}, v{a+2}, v{a+3}')
        k(f'buffer_store_dwordx2 v[{XV+2*i}:{XV+2*i+1}], v{VO}, s[64:67], 0 offen offset:{t*64+rg*16}')
    for i in range(32): k(f'v_mul_f32 v{S2+i}, v{S2+i}, v{g.acc+i}')
    for i in range(8):
        t,rg=i>>2,i&3
        k(f'v_cvt_pk_bf16_f32 v{GA+2*i}, v{S2+4*i}, v{S2+4*i+1}'); k(f'v_cvt_pk_bf16_f32 v{GA+2*i+1}, v{S2+4*i+2}, v{S2+4*i+3}')
        k(f'buffer_store_dwordx2 v[{GA+2*i}:{GA+2*i+1}], v{VO}, s[68:71], 0 offen offset:{t*64+rg*16}')
    for j in range(4): k(f'v_add_f32 v{4+j}, v{g.acc+j}, v{g.acc+4+j}')
    for i in range(8,32): k(f'v_add_f32 v{4+(i&3)}, v{4+(i&3)}, v{g.acc+i}')
    k('v_add_f32 v4, v4, v5'); k('v_add_f32 v6, v6, v7'); k('v_add_f32 v8, v4, v6'); k('v_mul_f32 v2, 0x3d000000, v8')
    for i in range(32): k(f'v_sub_f32 v{g.acc+i}, v{g.acc+i}, v2')
    for j in range(4): k(f'v_mul_f32 v{4+j}, v{g.acc+j}, v{g.acc+j}')
    for i in range(4,32): k(f'v_fmac_f32 v{4+(i&3)}, v{g.acc+i}, v{g.acc+i}')
    k('v_add_f32 v4, v4, v5'); k('v_add_f32 v6, v6, v7'); k('v_add_f32 v9, v4, v6')
    k(f'buffer_store_dwordx2 v[8:9], v{VS}, s[72:75], 0 offen')
    k.ts(5); k.tsdump(3,6,6)
    k('s_endpgm')
    k.lab('p3_special')
    k('s_sub_u32 s61, s2, 224'); k('s_waitcnt lgkmcnt(0)')
    srd(k,8,6,WS_SPEC,2560); srd(k,12,26,0,640*3456); srd(k,16,28,0,640*3456); srd(k,20,6,WS_REC,2*1728*16)
    g2=Gemm(k,4,4,1,10,4,1280,[(12,3456),(16,3456)],vbase=16,csplit=True)
    k('s_mov_b32 s36, 0'); k('s_lshl_b32 s37, s61, 7')
    g2.setup(1,3,8,36,[37,37],2)
    g2.run(3)
    k('''s_lshr_b32 s38, s3, 1
    s_mul_i32 s38, s38, 1728
    s_lshl_b32 s39, s61, 6
    s_add_u32 s38, s38, s39
    s_and_b32 s39, s3, 1
    s_lshl_b32 s39, s39, 5
    s_add_u32 s38, s38, s39
    v_lshrrev_b32 v3, 5, v1
    v_lshlrev_b32 v3, 2, v3
    v_add_u32 v3, s38, v3
    v_lshlrev_b32 v3, 4, v3
    v_and_b32 v2, 31, v1
    v_lshl_add_u32 v3, v2, 3, v3
    v_cmp_gt_u32 vcc, 2, v2
    s_and_saveexec_b64 s[40:41], vcc''')
    for r in range(16):
        a=g2.acc+r; d=4+2*(r%4)
        k(f'v_and_b32 v12, 0xffff0000, v{a}'); k(f'v_sub_f32 v13, v{a}, v12'); k(f'v_cvt_pk_bf16_f32 v{d}, v12, v13'); k(f'v_mov_b32 v{d+1}, v{d}')
        k(f'buffer_store_dwordx2 v[{d}:{d+1}], v3, s[20:23], 0 offen offset:{(8*(r>>2)+(r&3))*16}')
        k('s_nop 1')
    endk(k)
    return k.text(192),f'grid=(251,1,1) block=(256,1,1) lds={max(g.LDS,g2.LDS)}'

def p4():
    k=K('p4_kernel'); guard(k,216); k.ts(0)
    ldptr(k,4,4); ldptr(k,24,5); ldptr(k,6,11)
    lane_wave(k,1,3)
    k('s_and_b32 s60, s2, 7'); k('s_lshl_b32 s60, s60, 8'); k('s_lshr_b32 s61, s2, 3')
    k('s_waitcnt lgkmcnt(0)')
    srd(k,8,6,WS_Y2,XB); srd(k,12,4,0,640*3456); srd(k,16,24,0,640*3456); srd(k,20,6,WS_REC,2*1728*16)
    srd(k,64,6,WS_ST,2048*160); srd(k,68,6,WS_HH,2048*3456)
    g=Gemm(k,8,8,4,10,3,1280,[(12,3456),(16,3456)],vbase=16)
    k('s_mul_i32 s36, s60, 1280'); k('s_lshl_b32 s37, s61, 7')
    g.setup(1,3,8,36,[37,37],2)
    R=(g.vend+3)//4*4
    RC=R; ST=RC+16; VO=ST+20; BF=(VO+1+3)//4*4; K0=BF+4; K1=K0+1; IR=K0+2; TT=K0+4
    k('v_and_b32 v2, 31, v1'); k('s_lshl_b32 s38, s61, 6'); k('v_add_u32 v3, s38, v2'); k('v_lshlrev_b32 v3, 4, v3')
    for t in range(4):
        k(f's_mov_b32 s38, {((t>>1)*1728+(t&1)*32)*16}'); k(f'buffer_load_dwordx4 v[{RC+4*t}:{RC+4*t+3}], v3, s[20:23], s38 offen')
    k('s_lshl_b32 s59, s3, 5'); k('s_add_u32 s59, s59, s60'); k('v_add_u32 v2, s59, v2')
    k('v_lshrrev_b32 v4, 5, v1'); k('v_mul_u32_u24 v5, 160, v2'); k('v_mul_u32_u24 v3, 80, v4'); k('v_add_u32 v5, v5, v3')
    for i in range(5): k(f'buffer_load_dwordx4 v[{ST+4*i}:{ST+4*i+3}], v5, s[64:67], 0 offen offset:{16*i}')
    k('s_movk_i32 s59, 3456'); k(f'v_mul_lo_u32 v{VO}, v2, s59'); k(f'v_lshl_add_u32 v{VO}, v4, 3, v{VO}'); k(f'v_add_u32 v{VO}, s37, v{VO}')
    def pre():
        k(f's_waitcnt vmcnt({g.S*g.n})')
        k(f'v_add_f32 v2, v{ST}, v{ST+2}')
        for i in range(2,10): k(f'v_add_f32 v2, v2, v{ST+2*i}')
        k('v_mov_b32 v3, v2'); k('s_nop 1'); k('v_permlane32_swap_b32 v2, v3'); k('s_nop 1'); k('v_add_f32 v2, v2, v3')
        k('v_mul_f32 v2, 0x3acccccd, v2')
        k('v_mov_b32 v3, 0')
        for i in range(10):
            k(f'v_mul_f32 v4, 0x3d000000, v{ST+2*i}'); k('v_sub_f32 v4, v4, v2'); k('v_mul_f32 v4, v4, v4')
            k(f'v_add_f32 v3, v3, v{ST+2*i+1}'); k('v_fmac_f32 v3, 0x42000000, v4')
        k('v_mov_b32 v4, v3'); k('s_nop 1'); k('v_permlane32_swap_b32 v3, v4'); k('s_nop 1'); k('v_add_f32 v3, v3, v4')
        k(f'v_mov_b32 v{IR}, 0x3727c5ac'); k(f'v_fmac_f32 v{IR}, 0x3acccccd, v3')
        k(f'v_sqrt_f32 v5, v{IR}'); k(f'v_rsq_f32 v6, v{IR}'); k('s_nop 0')
        k('v_sub_f32 v2, 0, v2')
        k('v_and_b32 v7, 0xffff0000, v2'); k('v_sub_f32 v2, v2, v7'); k(f'v_cvt_pk_bf16_f32 v{BF}, v7, v7'); k(f'v_cvt_pk_bf16_f32 v{BF+1}, v2, v2')
        k('v_and_b32 v7, 0xffff0000, v5'); k('v_sub_f32 v5, v5, v7'); k(f'v_cvt_pk_bf16_f32 v{BF+2}, v7, v7'); k(f'v_cvt_pk_bf16_f32 v{BF+3}, v5, v5')
        k('v_cmp_gt_u32 vcc, 32, v1')
        for i in range(4): k(f'v_cndmask_b32 v{BF+i}, 0, v{BF+i}, vcc')
        k(f'v_mul_f32 v{K0}, 0xc0135761, v6'); k('v_mul_f32 v7, v6, v6'); k('v_mul_f32 v7, v7, v6'); k(f'v_mul_f32 v{K1}, 0xbdd2d3e8, v7')
        k('s_nop 1')
        for t in range(4):
            a=g.acc+16*t
            k(f'v_mfma_f32_32x32x16_bf16 v[{a}:{a+15}], v[{RC+4*t}:{RC+4*t+3}], v[{BF}:{BF+3}], v[{a}:{a+15}]')
    g.run(3,pre_wait=pre)
    for t in range(2):
        for rg in range(4):
            for e in range(4):
                ag=g.acc+16*t+4*rg+e; au=ag+32; x=TT+e; y=TT+4+e
                k(f'v_mul_f32 v{x}, v{ag}, v{ag}'); k(f'v_fma_f32 v{x}, v{x}, v{K1}, v{K0}'); k(f'v_mul_f32 v{x}, v{x}, v{ag}')
                k(f'v_exp_f32 v{x}, v{x}'); k(f'v_mul_f32 v{y}, v{ag}, v{au}'); k(f'v_fma_f32 v{x}, v{x}, v{IR}, v{IR}')
                k(f'v_rcp_f32 v{x}, v{x}')
            k('s_nop 0')
            for e in range(4): k(f'v_mul_f32 v{TT+4+e}, v{TT+4+e}, v{TT+e}')
            d=2+2*((4*t+rg)%6)
            k(f'v_cvt_pk_bf16_f32 v{d}, v{TT+4}, v{TT+5}'); k(f'v_cvt_pk_bf16_f32 v{d+1}, v{TT+6}, v{TT+7}')
            k(f'buffer_store_dwordx2 v[{d}:{d+1}], v{VO}, s[68:71], 0 offen offset:{t*64+rg*16}')
    k.ts(5); k.tsdump(4,6,6)
    endk(k)
    assert TT+8<=256
    return k.text(256),f'grid=(216,1,1) block=(512,1,1) lds={g.LDS}'

def p5():
    k=K('p5_kernel'); guard(k,224); k.ts(0)
    ldptr(k,4,6); ldptr(k,6,11); ldptr(k,24,9)
    lane_wave(k,1,3)
    rbcb(k,2,60,61,220)
    k('s_waitcnt lgkmcnt(0)')
    srd(k,8,6,WS_HH,2048*3456); srd(k,12,4,0,1728*1280); srd(k,16,6,WS_MOD,15360); srd(k,20,6,WS_X2,XB); srd(k,64,24,0,XB)
    g=Gemm(k,4,3,2,27,S5,3456,[(12,1280)],vbase=16)
    k('s_mul_i32 s36, s60, 3456'); k('s_lshl_b32 s37, s61, 7')
    g.setup(1,3,8,36,[37],2)
    R=(g.vend+3)//4*4
    XV=R; GB=R+16; VO=GB+32; VM=VO+1
    rowoff(k,VO,60,1280,2)
    k(f'v_lshrrev_b32 v3, 5, v1'); k(f'v_lshlrev_b32 v4, 3, v3'); k(f'v_add_u32 v{VO}, v{VO}, v4'); k(f'v_add_u32 v{VO}, s37, v{VO}')
    k(f'v_lshlrev_b32 v{VM}, 4, v3'); k('s_lshl_b32 s38, s61, 8'); k(f'v_add_u32 v{VM}, s38, v{VM}')
    for t in range(2):
        for rg in range(4):
            i=4*t+rg
            k(f'buffer_load_dwordx2 v[{XV+2*i}:{XV+2*i+1}], v{VO}, s[20:23], 0 offen offset:{t*64+rg*16}')
            k(f's_movk_i32 s38, {5*2560}'); k(f'buffer_load_dwordx4 v[{GB+4*i}:{GB+4*i+3}], v{VM}, s[16:19], s38 offen offset:{t*128+rg*32}')
    g.run(3)
    for i in range(8):
        t,rg=i>>2,i&3
        for e in range(2):
            x=XV+2*i+e
            k(f'v_lshlrev_b32 v2, 16, v{x}'); k(f'v_and_b32 v3, 0xffff0000, v{x}')
            k(f'v_fma_f32 v{g.acc+4*i+2*e}, v{g.acc+4*i+2*e}, v{GB+4*i+2*e}, v2'); k(f'v_fma_f32 v{g.acc+4*i+2*e+1}, v{g.acc+4*i+2*e+1}, v{GB+4*i+2*e+1}, v3')
        a=g.acc+4*i
        k(f'v_cvt_pk_bf16_f32 v{XV+2*i}, v{a}, v{a+1}'); k(f'v_cvt_pk_bf16_f32 v{XV+2*i+1}, v{a+2}, v{a+3}')
        k(f'buffer_store_dwordx2 v[{XV+2*i}:{XV+2*i+1}], v{VO}, s[64:67], 0 offen offset:{t*64+rg*16}')
    k.ts(5); k.tsdump(5,6,6)
    endk(k)
    return k.text(160),f'grid=(224,1,1) block=(256,1,1) lds={g.LDS}'
```

```python
from gen_common import *
from gen_p01 import guard,endk,lane_wave
from gen_p345 import rbcb
from gen_g2 import G2
import os
E=lambda n,d:int(os.environ.get(n,d))
def eaddr(k,g,vE,sWave,base,vt,vl=1):
    a,b=vt,vt+1
    k(f'v_and_b32 v{a}, 31, v{vl}'); k(f's_lshl_b32 s{g.sT}, s{sWave}, 5'); k(f'v_add_u32 v{a}, s{g.sT}, v{a}')
    k(f'v_lshrrev_b32 v{b}, 1, v{a}'); k(f'v_and_b32 v{b}, 7, v{b}'); k(f'v_lshlrev_b32 v{b}, 4, v{b}'); k(f'v_lshl_add_u32 v{a}, v{a}, 7, v{b}')
    k(f'v_lshrrev_b32 v{b}, 5, v{vl}'); k(f'v_lshl_add_u32 v{a}, v{b}, 3, v{a}'); k(f'v_add_u32 v{vE}, {base}, v{a}')
def p5():
    NL=E('NL5',4); S=E('S5',4); NWC=3
    k=K('p5_kernel'); guard(k,224); k.ts(0)
    ldptr(k,4,6); ldptr(k,6,11); ldptr(k,24,9)
    lane_wave(k,1,3)
    rbcb(k,2,60,61,220)
    g=G2(k,NWC,NL,2,27,S,3456,'r128',[(12,1280)],vbase=8)
    k('s_lshl_b32 s37, s61, 7')
    k(f's_cmp_lt_u32 s3, {NWC}'); k('s_cbranch_scc1 p5_comp')
    k('s_mul_i32 s36, s60, 3456')
    g.lsetup(3,8,36,[37],2)
    nE=12//NL; vE=(g.lend+1)//2*2
    k('s_mul_i32 s38, s60, 1280'); k('s_add_u32 s38, s38, s37')
    g.xoffs(vE,nE,1280,38,2)
    k('s_waitcnt lgkmcnt(0)')
    srd(k,8,6,WS_HH,2048*3456); srd(k,12,4,0,1728*1280); srd(k,20,6,WS_X2,XB); srd(k,64,24,0,XB)
    F0=g.free_slot(0)
    g.loader(late=lambda:g.tile_dma(vE,nE,20,F0),nlate=nE)
    k('s_waitcnt vmcnt(0)'); k('s_barrier'); k.ts(4); k('s_barrier')
    g.tile_store(vE,nE,64,F0,vE+nE)
    k.ts(5)
    if PROFL(): k(f's_mov_b32 s3, 0') ; k.tsdump(5,6,6)
    k('s_endpgm')
    k.lab('p5_comp')
    g.csetup(3,2)
    R=(g.vend+3)//4*4
    GB=R; XV=R+32; VE=XV+16; VM=VE+1; TA=VM+1
    k(f'v_lshrrev_b32 v3, 5, v1'); k(f'v_lshlrev_b32 v{VM}, 4, v3'); k('s_lshl_b32 s38, s61, 8'); k(f'v_add_u32 v{VM}, s38, v{VM}')
    eaddr(k,g,VE,3,F0,2)
    k('s_waitcnt lgkmcnt(0)')
    srd(k,16,6,WS_MOD,15360)
    k(f's_movk_i32 s38, {5*2560}')
    for i in range(8):
        t,rg=i>>2,i&3
        k(f'buffer_load_dwordx4 v[{GB+4*i}:{GB+4*i+3}], v{VM}, s[16:19], s38 offen offset:{t*128+rg*32}')
    g.compute()
    k('s_barrier')
    for c in range(8):
        k(f'v_xor_b32 v{TA+c}, {c<<4}, v{VE}'); k(f'ds_read_b64 v[{XV+2*c}:{XV+2*c+1}], v{TA+c}')
    k('s_waitcnt vmcnt(0)')
    for i in range(8):
        k(f's_waitcnt lgkmcnt({min(7-i,15)+ (0)})') if i>0 or True else None
        for e in range(2):
            x=XV+2*i+e
            k(f'v_lshlrev_b32 v2, 16, v{x}'); k(f'v_and_b32 v3, 0xffff0000, v{x}')
            k(f'v_fma_f32 v{g.acc+4*i+2*e}, v{g.acc+4*i+2*e}, v{GB+4*i+2*e}, v2'); k(f'v_fma_f32 v{g.acc+4*i+2*e+1}, v{g.acc+4*i+2*e+1}, v{GB+4*i+2*e+1}, v3')
        a=g.acc+4*i
        k(f'v_cvt_pk_bf16_f32 v{XV+2*i}, v{a}, v{a+1}'); k(f'v_cvt_pk_bf16_f32 v{XV+2*i+1}, v{a+2}, v{a+3}')
    for c in range(8): k(f'ds_write_b64 v{TA+c}, v[{XV+2*c}:{XV+2*c+1}]')
    k('s_waitcnt lgkmcnt(0)'); k('s_barrier')
    k.ts(5)
    if not PROFL(): k.tsdump(5,6,6)
    endk(k)
    return k.text(160),f'grid=(224,1,1) block=({64*(NWC+NL)},1,1) lds={g.LDS}'
def PROFL(): return os.environ.get('PROFL','')=='1'
```

```python
import sys
sys.path.insert(0,'dev')
from gen_common import *
import gen_common
if '--prof' in sys.argv: gen_common.PROF=True; sys.argv.remove('--prof')
import gen_p01
def build(phases,out):
    hdr=open('cdna_kernels/'+NAME+'.s.ref').read().split('\n')
    top=[l for l in hdr if l.startswith(';') and '@launch' not in l and 'Override' not in l and 'grid=ceil' not in l]
    body='';ll=[]
    for n,f in phases:
        t,l=f(); body+=t; ll.append(f'; @launch kernel={n}_kernel {l}')
    open(out,'w').write('\n'.join(top)+'\n'+'\n'.join(ll)+'\n.amdgcn_target "amdgcn-amd-amdhsa--gfx950"\n'+body)
if __name__=='__main__':
    ph=[('p0',gen_p01.p0),('p1',gen_p01.p1)]
    try:
        import gen_p2; ph.append(('p2',gen_p2.p2))
        import gen_p345; ph+= [('p3',gen_p345.p3),('p4',gen_p345.p4),('p5',gen_p345.p5)]
    except ImportError as e: print('partial',e)
    import os,gen_v2
    V2=os.environ.get('V2','').split(',')
    ph=[(n,getattr(gen_v2,n) if n in V2 else f) for n,f in ph]
    build(ph,sys.argv[1] if len(sys.argv)>1 else 'k.s')
```
